```python
import torch

def _softmax(x, axis=-1):
    return torch.softmax(x, dim=axis)
def _gelu(x):
    return torch.nn.functional.gelu(x, approximate="tanh")
def _silu(x):
    return torch.nn.functional.silu(x)
def _sigmoid(x):
    return torch.sigmoid(x)
def _layernorm(x, axis=-1, eps=1e-5):
    m = x.mean(dim=axis, keepdim=True)
    v = x.var(dim=axis, keepdim=True, unbiased=False)
    return (x - m) / torch.sqrt(v + eps)
def _scatter_add(tgt, idx, src, axis=0):
    return tgt.clone().index_add_(axis, idx, src)
def _segment_sum(src, seg, n):
    out = torch.zeros((n,) + src.shape[1:], dtype=src.dtype)
    return out.index_add_(0, seg, src)
def _pad(x, pw):
    flat = tuple(v for pair in reversed(pw) for v in pair)
    return torch.nn.functional.pad(x, flat)

kernel_name = 'concat_heads__spectral_fnet__sliding_block__prompt'

def setup_inputs():

    _w = (lambda a: (lambda t: t.to(torch.bfloat16) if t.is_floating_point() else t)(torch.as_tensor(a)))
    def _A_setup():
        B, S, D = 1, 2048, 512
        ns = torch.arange(S)[:, None] * torch.arange(S)[None, :]
        nd = torch.arange(D)[:, None] * torch.arange(D)[None, :]
        Ws_re = torch.cos(-2.0 * torch.pi * ns / S).to(float)
        Ws_im = torch.sin(-2.0 * torch.pi * ns / S).to(float)
        Wd_re = torch.cos(-2.0 * torch.pi * nd / D).to(float)
        Wd_im = torch.sin(-2.0 * torch.pi * nd / D).to(float)
        return {
            "x": _w((lambda *s: torch.randn(*s, dtype=torch.bfloat16) * 0.05)(B, S, D)),
            "dft_seq_re": _w(Ws_re),
            "dft_seq_im": _w(Ws_im),
            "dft_hid_re": _w(Wd_re),
            "dft_hid_im": _w(Wd_im),
        }
    _A_in = _A_setup()

    def _B_setup():
        B, S, D = 1, 2048, 512
        return {
            "x": _w((lambda *s: torch.randn(*s, dtype=torch.bfloat16) * 0.2)(B, S, D)),
            "wqkv": _w((lambda *s: torch.randn(*s, dtype=torch.bfloat16) * 0.8)(D, 3 * D)),
            "wo": _w((lambda *s: torch.randn(*s, dtype=torch.bfloat16) * 0.2)(D, D)),
        }
    _B_in = _B_setup()

    return {
        "A_x": _A_in["x"],
        "A_dft_seq_re": _A_in["dft_seq_re"],
        "A_dft_seq_im": _A_in["dft_seq_im"],
        "A_dft_hid_re": _A_in["dft_hid_re"],
        "A_dft_hid_im": _A_in["dft_hid_im"],
        "B_x": _B_in["x"],
        "B_wqkv": _B_in["wqkv"],
        "B_wo": _B_in["wo"],
    }

def reference(A_x, A_dft_seq_re, A_dft_seq_im, A_dft_hid_re, A_dft_hid_im, B_x, B_wqkv, B_wo):
    def _A_ref(x, dft_seq_re, dft_seq_im, dft_hid_re, dft_hid_im):
        a = torch.einsum("bsd,ed->bse", x, dft_hid_re)
        b = torch.einsum("bsd,ed->bse", x, dft_hid_im)
        y = torch.einsum("ts,bse->bte", dft_seq_re, a) - torch.einsum("ts,bse->bte", dft_seq_im, b)
        return y

    def _B_ref(x, wqkv, wo):
        B, S, D = x.shape
        H = 32; Dh = D // H; W = 256
        qkv = (lambda x, *d: x.permute(*d))((x @ wqkv).reshape(B, S, 3, H, Dh), 2, 0, 3, 1, 4)
        q, k, v = qkv[0], qkv[1], qkv[2]
        scores = torch.einsum("bhqd,bhkd->bhqk", q, k) * (Dh ** -0.5)
        idx = torch.arange(S)
        mask = (idx[:, None] - idx[None, :] >= 0) & (idx[:, None] - idx[None, :] < W)
        scores = torch.where(mask[None, None], scores, -1e9)
        p = _softmax(scores, axis=-1)
        o = torch.einsum("bhqk,bhkd->bhqd", p, v)
        return (lambda x, *d: x.permute(*d))(o, 0, 2, 1, 3).reshape(B, S, D) @ wo

    a = _A_ref(A_x, A_dft_seq_re, A_dft_seq_im, A_dft_hid_re, A_dft_hid_im)
    b = _B_ref(B_x, B_wqkv, B_wo)
    return torch.concatenate([a, b], axis=-1)
```

```python
NAME = "concat_heads__spectral_fnet__sliding_block__prompt"

class Asm:
    def __init__(self):
        self.lines = []
        self.uid = 0
    def __call__(self, s=""):
        for l in s.split("\n"):
            self.lines.append("    " + l.strip() if l.strip() and not l.strip().endswith(":") else l.strip())
    def label(self, name): self.lines.append(name + ":")
    def newlabel(self, p="L"):
        self.uid += 1
        return f"{p}_{self.uid}"
    def text(self): return "\n".join(self.lines) + "\n"

def kernel_file(kernels, header_comments=""):
    out = []
    if header_comments: out.append(header_comments.rstrip("\n"))
    if len(kernels) == 1 and kernels[0]["name"] == NAME + "_kernel":
        k = kernels[0]
        out.append(f"; @launch grid=({k['grid']},1,1) block=({k['block']},1,1) lds={k['lds']}")
    else:
        for k in kernels:
            out.append(f"; @launch kernel={k['name']} grid=({k['grid']},1,1) block=({k['block']},1,1) lds={k['lds']}")
    out.append('.amdgcn_target "amdgcn-amd-amdhsa--gfx950"')
    out.append(".text")
    seen = set()
    for k in kernels:
        if k["name"] in seen: continue
        seen.add(k["name"])
        out.append(f".globl {k['name']}\n.p2align 8\n.type {k['name']},@function\n{k['name']}:")
        out.append(k["body"].rstrip("\n"))
    out.append('.section .rodata,"a"')
    seen = set()
    for k in kernels:
        if k["name"] in seen: continue
        seen.add(k["name"])
        out.append(f""".p2align 6
.amdhsa_kernel {k['name']}
  .amdhsa_next_free_vgpr {k.get('vgpr',256)}
  .amdhsa_next_free_sgpr {k.get('sgpr',102)}
  .amdhsa_accum_offset {k.get('accum',256)}
  .amdhsa_group_segment_fixed_size 0
  .amdhsa_kernarg_size 88
  .amdhsa_user_sgpr_count 2
  .amdhsa_user_sgpr_kernarg_segment_ptr 1
  .amdhsa_system_sgpr_workgroup_id_x 1
.end_amdhsa_kernel""")
    return "\n".join(out) + "\n"
```

```python
import sys, math, struct
from asmlib import *

def f2u(x): return struct.unpack("<I", struct.pack("<f", x))[0]

WS_EPOCH = 0
FS = 64
WS_FLAGK = 0x10000
WS_FLAGV = 0x20000
WS_FLAG2 = 0x30000
WS_FLAGA = 0x50000
WS_STAMP = 0x60000
WS_KW = 1 << 20
WS_VW = 3 << 20
WS_OW = 5 << 20
WS_ZW = 8 << 20
WS_USED = 11 << 20
L_X = 0; L_RING = 65536; L_OWNK = 131072; L_OWNV = 139264; L_AUX = 147456
L_KREM = L_RING; L_VREM = L_X; L_QF = L_RING + 32768
L_WOA = L_RING + 32768; L_WOB = L_X + 32768
POLL_MAX = 20000

def gen(stamps=False, rotmode="xcd+3", qsched={5:[0],6:[1],7:[2],8:[3]}, fk_at=0, fv_at=2):
    a = Asm()
    nstamp = [0]
    def stamp(idx):
        if stamps: a(f"s_memtime s[{STAMP0+2*idx}:{STAMP0+2*idx+1}]")
    sX, sW, sAX, sWO, sOUT, sWS, sKW, sVW = 16, 20, 24, 28, 32, 36, 40, 44
    XCD, J, R, G, WV, ROT, TAG = 48, 49, 50, 51, 52, 53, 54
    T0, T1, T2, T3, T4, T5 = 55, 56, 57, 58, 59, 60
    LB = 61
    ZPEND = 62; IMIN = 63
    MSK = 64
    VMASK = 96
    CEXP = 98
    T6, T7 = 100, 101
    def srd(s, ptr, size):
        a(f"s_mov_b32 s{s}, s{ptr}\ns_mov_b32 s{s+1}, s{ptr+1}\ns_mov_b32 s{s+2}, {size:#x}\ns_mov_b32 s{s+3}, 0x20000")
    def S4(s): return f"s[{s}:{s+3}]"
    def V(b, n=1): return f"v{b}" if n == 1 else f"v[{b}:{b+n-1}]"
    VST = 255
    def stamp(idx):
        if stamps:
            a(f"s_memtime s[{T6}:{T7}]\ns_waitcnt lgkmcnt(0)\nv_writelane_b32 v{VST}, s{T6}, {idx}")
    def barrier(): a("s_barrier")

    a("s_cmp_ge_u32 s2, 256\ns_cbranch_scc1 L_end")
    a("s_load_dwordx4 s[4:7], s[0:1], 40")
    a("s_load_dwordx2 s[8:9], s[0:1], 80")
    a("s_load_dwordx2 s[10:11], s[0:1], 0")
    a("s_load_dwordx4 s[12:15], s[0:1], 56")
    if stamps:
        a(f"s_memrealtime s[{T6}:{T7}]")
    a("v_lshrrev_b32 v2, 6, v0\nv_and_b32 v1, 63, v0")
    a(f"s_and_b32 s{XCD}, s2, 7\ns_lshr_b32 s{J}, s2, 3")
    a(f"v_readfirstlane_b32 s{WV}, v2")
    a(f"s_lshr_b32 s{R}, s{XCD}, 1\ns_lshl_b32 s{R}, s{R}, 3\ns_and_b32 s{T0}, s{J}, 7\ns_add_u32 s{R}, s{R}, s{T0}")
    a(f"s_and_b32 s{G}, s{XCD}, 1\ns_lshl_b32 s{G}, s{G}, 2\ns_lshr_b32 s{T0}, s{J}, 3\ns_add_u32 s{G}, s{G}, s{T0}")
    a(f"s_cmp_lt_u32 s{WV}, 4\ns_cbranch_scc1 L_comp")

    vXa, vXb, vWa, vWb, vAx = 4, 5, 6, 7, 8
    a(f"s_sub_u32 s{T1}, s{WV}, 4")
    if rotmode == "xcd+3":
        a(f"s_add_u32 s{ROT}, s{R}, s{G}\ns_and_b32 s{ROT}, s{ROT}, 3\ns_add_u32 s{ROT}, s{ROT}, s{XCD}")
    else:
        a(f"s_mov_b32 s{ROT}, 0")
    a(f"s_lshl_b32 s{T2}, s{T1}, 4")
    a(f"s_lshl_b32 s{T0}, s{R}, 6\ns_add_u32 s{T0}, s{T0}, s{T2}")
    a("v_lshrrev_b32 v3, 3, v1")
    a(f"v_add_u32 v9, s{T2}, v3\nv_add_u32 v10, s{T0}, v3")
    a("v_lshrrev_b32 v11, 1, v3\nv_xor_b32 v11, v11, v1\nv_and_b32 v11, 7, v11\nv_lshlrev_b32 v11, 4, v11")
    a(f"v_lshl_add_u32 v{vXa}, v10, 10, v11\nv_xor_b32 v{vXb}, 64, v{vXa}\nv_add_u32 v{vXb}, 8192, v{vXb}")
    a("v_lshlrev_b32 v11, 1, v3\nv_and_b32 v11, 4, v11\nv_xor_b32 v11, v11, v1\nv_and_b32 v11, 7, v11\nv_lshlrev_b32 v11, 4, v11")
    a(f"v_mul_u32_u24 v9, 3072, v9\ns_lshl_b32 s{T0}, s{G}, 7\nv_add3_u32 v{vWa}, v9, v11, s{T0}\nv_add_u32 v{vWb}, {8*3072}, v{vWa}")
    a(f"s_lshl_b32 s{LB}, s{T1}, 11")
    a("s_waitcnt lgkmcnt(0)")
    srd(sX, 4, 0x200000); srd(sW, 6, 0x180000)
    def chunk_off(i):
        a(f"s_add_u32 s{T2}, s{ROT}, {i}\ns_and_b32 s{T2}, s{T2}, 7\ns_mul_i32 s{T3}, s{T2}, {64*3072}")
    def issue_kv(i):
        slot = L_RING + (i % 4) * 16384
        chunk_off(i)
        a(f"s_lshl_b32 s{T2}, s{T2}, 7")
        a(f"s_add_u32 m0, s{LB}, {L_X + i*8192}\ns_add_u32 s{T3}, s{T3}, 1024")
        a(f"buffer_load_dwordx4 v{vXa}, {S4(sX)}, s{T2} offen lds")
        a(f"s_add_u32 m0, s{LB}, {L_X + i*8192 + 1024}\ns_add_u32 s{T0}, s{T3}, 1024")
        a(f"buffer_load_dwordx4 v{vXb}, {S4(sX)}, s{T2} offen lds")
        for seg, sr in ((0, T3), (1, T0)):
            for ii in range(2):
                a(f"s_add_u32 m0, s{LB}, {slot + seg*8192 + ii*1024}\ns_nop 0")
                a(f"buffer_load_dwordx4 v{(vWa, vWb)[ii]}, {S4(sW)}, s{sr} offen lds")
    def issue_q(jq):
        for cc in range(2):
            chunk_off(2*jq + cc)
            for ii in range(2):
                a(f"s_add_u32 m0, s{LB}, {L_RING + jq*16384 + cc*8192 + ii*1024}\ns_nop 0")
                a(f"buffer_load_dwordx4 v{(vWa, vWb)[ii]}, {S4(sW)}, s{T3} offen lds")
    issue_kv(0); issue_kv(1)
    if stamps: a(f"v_mov_b32 v{VST}, 0\nv_writelane_b32 v{VST}, s{T6}, 0")
    stamp(1)
    def setup_srd():
        a(f"s_load_dword s{TAG}, s[8:9], {WS_EPOCH}")
        srd(sWS, 8, WS_USED); srd(sWO, 12, 0x80000); srd(sOUT, 14, 0x400000)
        a(f"s_lshl_b32 s{T4}, s{G}, 18")
        a(f"s_add_u32 s{T5}, s{T4}, {WS_KW}\ns_add_u32 s{sKW}, s8, s{T5}\ns_addc_u32 s{sKW+1}, s9, 0\ns_mov_b32 s{sKW+2}, 0x40000\ns_mov_b32 s{sKW+3}, 0x20000")
        a(f"s_add_u32 s{T5}, s{T4}, {WS_VW}\ns_add_u32 s{sVW}, s8, s{T5}\ns_addc_u32 s{sVW+1}, s9, 0\ns_mov_b32 s{sVW+2}, 0x40000\ns_mov_b32 s{sVW+3}, 0x20000")
        a(f"s_mov_b32 s{VMASK}, 0xffff\ns_mov_b32 s{VMASK+1}, 0xffff")
        c = f2u(0.25 * math.log2(math.e))
        a(f"s_mov_b32 s{CEXP}, {c:#x}\ns_mov_b32 s{CEXP+1}, {c:#x}")
        a("s_waitcnt lgkmcnt(0)")
        a(f"s_mul_i32 s{TAG}, s{TAG}, 0x9E3779B1\ns_add_u32 s{TAG}, s{TAG}, 0x7F4A7C15")
    def setup_masks():
        a("v_and_b32 v9, 31, v1\nv_lshrrev_b32 v10, 5, v1\nv_lshlrev_b32 v10, 2, v10\nv_sub_u32 v9, v9, v10")
        for r in range(16):
            a(f"v_cmp_le_i32 s[{MSK+2*r}:{MSK+2*r+1}], {(r&3)+8*(r>>2)}, v9")
        a("v_mov_b32 v10, 0xffff\nv_mov_b32 v11, 0xffff0000")
        for k in range(8):
            a(f"v_cndmask_b32 v{vPM+k}, 0, v10, s[{MSK+4*k}:{MSK+4*k+1}]")
            a(f"v_cndmask_b32 v9, 0, v11, s[{MSK+4*k+2}:{MSK+4*k+3}]")
            a(f"v_or_b32 v{vPM+k}, v{vPM+k}, v9")
        a("v_mov_b32 v9, 0x3f803f80")
        for k in range(16): a(f"v_mov_b32 v{vVB+k}, v9")
    vS = 64; vO = 208; vVB = 224; vPM = 240; vQ = 248
    cF = 16
    cTW = 24
    cM2 = 40
    cG3 = 56
    cA1 = 64
    K1, SRC, SGN = 4, 5, 6
    def piece_a1():
        a("v_and_b32 v12, 15, v1\nv_lshrrev_b32 v13, 4, v1")
        a("v_cvt_f32_u32 v14, v12")
        a(f"v_mul_f32 v15, {f2u(1/256.):#x}, v14")
        a(f"v_lshlrev_b32 v9, 6, v13\ns_lshr_b32 s{T4}, s{LB}, 9\nv_add_u32 v9, s{T4}, v9\nv_cvt_f32_u32 v9, v9\nv_mul_f32 v9, v9, v15\nv_mul_f32 v11, 16.0, v15".replace("16.0", f"{f2u(16.0):#x}"))
        for qq in range(4):
            for j in range(4):
                if j == 0: a("v_mov_b32 v10, v9")
                else: a("v_add_f32 v10, v10, v11")
                a(f"v_cos_f32 v{80+j}, v10\nv_sin_f32 v{84+j}, v10")
            a("v_add_f32 v9, v9, v15")
            a(f"v_cvt_pk_bf16_f32 v{cA1+4*qq}, v80, v81\nv_cvt_pk_bf16_f32 v{cA1+4*qq+1}, v82, v83")
            a(f"v_cvt_pk_bf16_f32 v{cA1+4*qq+2}, -v84, -v85\nv_cvt_pk_bf16_f32 v{cA1+4*qq+3}, -v86, -v87")
    def piece_f16():
        a(f"v_mul_f32 v15, {f2u(1/16.):#x}, v14\nv_lshlrev_b32 v9, 2, v13\nv_cvt_f32_u32 v9, v9\nv_mul_f32 v10, v9, v15")
        for k in range(4):
            a("v_cos_f32 v80, v10\nv_sin_f32 v81, v10\nv_add_f32 v10, v10, v15")
            a(f"v_cvt_pk_bf16_f32 v{cF+k}, v80, v81\nv_cvt_pk_bf16_f32 v{cF+4+k}, -v81, v80")
    def piece_tw():
        a(f"v_mul_f32 v15, {f2u(1/512.):#x}, v14\nv_lshlrev_b32 v9, 3, v13\nv_cvt_f32_u32 v9, v9\nv_mul_f32 v10, v9, v15")
        for i in range(8):
            a(f"v_cos_f32 v{cTW+i}, v10\nv_sin_f32 v{cTW+8+i}, v10\nv_add_f32 v10, v10, v15")
    def piece_m2():
        a(f"v_mul_f32 v15, {f2u(1/32.):#x}, v14\nv_lshlrev_b32 v9, 3, v13\nv_cvt_f32_u32 v9, v9\nv_mul_f32 v10, v9, v15")
        for k in range(4):
            for dC in range(2):
                a("v_cos_f32 v80, v10\nv_sin_f32 v81, v10\nv_add_f32 v10, v10, v15")
                a(f"v_cvt_pk_bf16_f32 v{cM2+8*dC+k}, v80, v81\nv_cvt_pk_bf16_f32 v{cM2+8*dC+4+k}, -v81, v80")
    def piece_g3():
        srd(sAX, 10, 0x200000)
        a(f"s_lshl_b32 s{SRC}, s{XCD}, 4\ns_and_b32 s{T4}, s{J}, 15\ns_add_u32 s{SRC}, s{SRC}, s{T4}")
        a(f"s_mov_b32 s{K1}, s{SRC}\ns_mov_b32 s{SGN}, 0")
        a(f"s_cmp_lt_u32 s{J}, 16\ns_cbranch_scc1 L_k1done")
        a(f"s_sub_u32 s{K1}, 256, s{SRC}\ns_mov_b32 s{SGN}, 0x80000000")
        a(f"s_cmp_lg_u32 s{SRC}, 0\ns_cbranch_scc1 L_k1done")
        a(f"s_mov_b32 s{K1}, 128\ns_mov_b32 s{SRC}, 128\ns_mov_b32 s{SGN}, 0")
        a.label("L_k1done")
        a(f"v_and_b32 v9, 7, v12\nv_lshlrev_b32 v9, 8, v9\nv_add_u32 v9, s{K1}, v9\nv_cvt_f32_u32 v9, v9\nv_mul_f32 v15, {f2u(1/2048.):#x}, v9")
        a("v_lshlrev_b32 v9, 1, v13\nv_cvt_f32_u32 v9, v9\nv_mul_f32 v10, v9, v15")
        a("v_lshrrev_b32 v11, 3, v12\nv_mul_u32_u24 v11, 0x8000, v11\nv_lshl_or_b32 v11, v11, 16, v11")
        for half in range(2):
            a("v_cos_f32 v80, v10\nv_sin_f32 v81, v10\nv_add_f32 v10, v10, v15")
            a(f"v_cvt_pk_bf16_f32 v{cG3+2*half}, v80, v81\nv_xor_b32 v{cG3+2*half+1}, v{cG3+2*half}, v11")
        a(f"v_bfe_u32 v9, v1, 1, 4\nv_lshlrev_b32 v9, 17, v9\nv_lshrrev_b32 v10, 5, v1\nv_lshl_add_u32 v9, v10, 13, v9\nv_and_b32 v10, 1, v1\nv_lshl_add_u32 v9, v10, 4, v9")
        a(f"s_lshl_b32 s{T4}, s{LB}, 4\ns_lshl_b32 s{T5}, s{XCD}, 10\ns_add_u32 s{T4}, s{T4}, s{T5}\ns_lshl_b32 s{T5}, s{J}, 5\ns_add_u32 s{T4}, s{T4}, s{T5}")
        a(f"v_add_u32 v{vAx}, s{T4}, v9")
    def issue_ax():
        a(f"s_lshl_b32 s{T0}, s{LB}, 1\ns_add_u32 m0, s{T0}, {L_AUX}\ns_mov_b32 s{T2}, 16384")
        a(f"buffer_load_dwordx4 v{vAx}, {S4(sAX)}, 0 offen lds")
        a(f"s_add_u32 m0, s{T0}, {L_AUX+1024}\ns_nop 0")
        a(f"buffer_load_dwordx4 v{vAx}, {S4(sAX)}, s{T2} offen lds")
    ledger = [("c0", 6), ("c1", 6)]
    def led(name, n): ledger.append((name, n))
    def lw_wait_for(name):
        idx = [k for k, (nm, _) in enumerate(ledger) if nm == name][0]
        a(f"s_waitcnt vmcnt({sum(n for _, n in ledger[idx+1:])})")
    def lw_wait(n): a(f"s_waitcnt vmcnt({n})")
    piece_a1()
    issue_kv(2); led("c2", 6)
    stamp(2)
    lw_wait_for("c0"); barrier()
    stamp(3)
    issue_kv(3); led("c3", 6); piece_f16(); piece_g3()
    lw_wait_for("c1"); barrier(); issue_kv(4); led("c4", 6); piece_tw()
    lw_wait_for("c2"); barrier(); issue_kv(5); led("c5", 6); piece_m2()
    lw_wait_for("c3"); barrier(); issue_kv(6); led("c6", 6); setup_srd()
    lw_wait_for("c4"); barrier(); issue_kv(7); led("c7", 6); issue_ax(); led("ax", 2); setup_masks()
    def qs(bi):
        for jq in qsched.get(bi, ()):
            issue_q(jq); led(f"q{jq}", 4)
    lw_wait_for("c5"); barrier(); qs(5)
    lw_wait_for("c6"); barrier(); qs(6)
    lw_wait_for("c7"); barrier(); qs(7)
    stamp(4)
    a("v_bfe_u32 v9, v1, 2, 2\nv_and_b32 v10, 3, v1")
    a(f"s_lshl_b32 s{T0}, s{LB}, 1\ns_add_u32 s{T0}, s{T0}, {L_AUX}")
    a(f"v_lshl_add_u32 v11, v13, 2, v9\nv_lshlrev_b32 v11, 5, v11\nv_lshl_add_u32 v11, v10, 3, v11\nv_add_u32 v11, s{T0}, v11")
    lw_wait_for("ax")
    for qq in range(4): a(f"ds_read_b64_tr_b16 v[{88+2*qq}:{89+2*qq}], v11 offset:{qq*512}")
    a(f"s_lshr_b32 s{T2}, s{LB}, 11\ns_and_b32 s{T2}, s{T2}, 1")
    a(f"v_xor_b32 v14, v12, v13\nv_xor_b32 v15, s{T2}, v13\nv_lshl_or_b32 v14, v15, 4, v14\nv_lshlrev_b32 v14, 3, v14\nv_add_u32 v14, s{T0}, v14")
    a("v_xor_b32 v15, 32, v14\nv_xor_b32 v60, 64, v14\nv_xor_b32 v61, 96, v14")
    a("s_waitcnt lgkmcnt(0)")
    for qq in range(4):
        for pl in range(2):
            d = 96 + 8*qq + 4*pl
            a(f"v_mfma_f32_16x16x16_bf16 v[{d}:{d+3}], v[{88+2*qq}:{89+2*qq}], v[{cA1+4*qq+2*pl}:{cA1+4*qq+2*pl+1}], 0")
    a("s_nop 7")
    wa = {(0,0):14, (0,1):15, (1,0):60, (1,1):61}
    for qq in range(4):
        for pl in range(2):
            d = 96 + 8*qq + 4*pl
            a(f"v_cvt_pk_bf16_f32 v{d}, v{d}, v{d+1}\nv_cvt_pk_bf16_f32 v{d+1}, v{d+2}, v{d+3}")
            a(f"ds_write_b64 v{wa[(qq&1,pl)]}, v[{d}:{d+1}] offset:{qq*1024+pl*512}")
    a("v_lshrrev_b32 v11, 1, v9\nv_and_b32 v62, 1, v9")
    a("v_lshl_or_b32 v63, v11, 3, v10\nv_lshl_or_b32 v63, v62, 2, v63")
    a(f"s_lshr_b32 s{T2}, s{LB}, 9\nv_xor_b32 v63, s{T2}, v63")
    a("v_and_b32 v80, 1, v13\nv_xor_b32 v80, v80, v10\nv_lshl_or_b32 v80, v62, 2, v80\nv_lshl_or_b32 v63, v80, 4, v63\nv_lshlrev_b32 v63, 3, v63")
    a(f"v_lshl_add_u32 v80, v13, 2, v11\nv_lshlrev_b32 v80, 10, v80\nv_add3_u32 v80, v80, v63, {'s%d' % T3}".replace(f"s{T3}", f"s{T3}") if False else
      f"v_lshl_add_u32 v80, v13, 2, v11\nv_lshlrev_b32 v80, 10, v80\nv_add_u32 v80, v80, v63\nv_add_u32 v80, {L_AUX}, v80")
    a("v_xor_b32 v81, 8, v80\nv_xor_b32 v82, 16, v80\nv_xor_b32 v83, 24, v80")
    a("s_waitcnt lgkmcnt(0)")
    lw_wait_for("q0"); barrier(); qs(8)
    stamp(5)
    for uu in range(4):
        for half in range(2):
            a(f"ds_read_b64_tr_b16 v[{88+4*uu+2*half}:{89+4*uu+2*half}], v{80+uu} offset:{half*2048}")
    a("v_lshlrev_b32 v11, 18, v12\nv_lshl_add_u32 v11, v13, 4, v11")
    a(f"s_lshl_b32 s{T0}, s{LB}, 5\ns_lshl_b32 s{T2}, s{XCD}, 11\ns_add_u32 s{T0}, s{T0}, s{T2}\ns_lshl_b32 s{T2}, s{J}, 6\ns_add_u32 s{T0}, s{T0}, s{T2}\ns_add_u32 s{T0}, s{T0}, {WS_ZW}")
    for uu in range(4):
        a(f"s_waitcnt lgkmcnt({6-2*uu})")
        for pl in range(2):
            d = 104 + 8*uu + 4*pl
            a(f"v_mfma_f32_16x16x32_bf16 v[{d}:{d+3}], v[{88+4*uu}:{91+4*uu}], v[{cF+4*pl}:{cF+4*pl+3}], 0")
    a(f"s_mov_b32 s{T4}, 0x00ff00ff\ns_cmp_eq_u32 s{LB}, 0\ns_cselect_b32 s{T2}, 0x01ff01ff, s{T4}")
    a("s_nop 4")
    for uu in range(4):
        d = 104 + 8*uu
        a(f"v_cvt_pk_bf16_f32 v{d}, v{d}, v{d+1}\nv_cvt_pk_bf16_f32 v{d+1}, v{d+2}, v{d+3}")
        a(f"v_cvt_pk_bf16_f32 v{d+2}, v{d+4}, v{d+5}\nv_cvt_pk_bf16_f32 v{d+3}, v{d+6}, v{d+7}")
        m = T2 if uu == 0 else T4
        a(f"s_mov_b32 exec_lo, s{m}\ns_mov_b32 exec_hi, s{m}")
        a(f"buffer_store_dwordx4 v[{d}:{d+3}], v11, {S4(sWS)}, s{T0} offen sc1")
        a("s_mov_b64 exec, -1")
        if uu < 3: a(f"s_add_u32 s{T0}, s{T0}, 16384")
    for k in range(8): a(f"v_xor_b32 v{cF+k}, s{SGN}, v{cF+k}")
    led("z", 4)
    lw_wait_for("q1"); barrier()
    lw_wait_for("q2"); barrier()
    lw_wait_for("q3"); barrier()
    stamp(6)
    PM1 = 63
    def poll_kv(base, lab, pre=None):
        a(f"s_lshl_b32 s{T0}, s{G}, 5\ns_add_u32 s{T0}, s{T0}, s{R}\ns_lshl_b32 s{T0}, s{T0}, 8\ns_add_u32 s{T0}, s{T0}, {base-4*4*FS}")
        a(f"v_lshlrev_b32 v252, 6, v1")
        a(f"s_min_u32 s{T2}, s{R}, 4\ns_sub_u32 s{T2}, 4, s{T2}\ns_lshl_b32 s{T2}, s{T2}, 2\ns_lshl_b32 s{T2}, 0xffff, s{T2}\ns_and_b32 s{T2}, s{T2}, 0xffff")
        a(f"s_mov_b32 exec_lo, s{T2}\ns_mov_b32 exec_hi, 0\ns_mov_b32 s{T3}, 0")
        a.label(lab)
        a(f"buffer_load_dword v253, v252, {S4(sWS)}, s{T0} offen sc1\ns_waitcnt vmcnt(0)")
        a(f"v_cmp_ne_u32 vcc, s{TAG}, v253\ns_add_u32 s{T3}, s{T3}, 1\ns_cbranch_vccz {lab}ok")
        a(f"s_cmp_lt_u32 s{T3}, {POLL_MAX}\ns_cbranch_scc1 {lab}")
        a.label(lab + "ok")
        a("s_mov_b64 exec, -1")
    a(f"s_cmp_lg_u32 s{WV}, 4\ns_cbranch_scc1 L_p1done")
    a(f"s_cmp_eq_u32 s{R}, 0\ns_cbranch_scc1 L_p1done")
    poll_kv(WS_FLAGK, "L_p1")
    a.label("L_p1done")
    lw_wait(0)
    stamp(7)
    barrier()
    a(f"s_cmp_lg_u32 s{WV}, 5\ns_cbranch_scc1 L_attn")
    a(f"s_lshl_b32 s{T0}, s2, 6\ns_add_u32 s{T0}, s{T0}, {WS_FLAGA}\nv_mov_b32 v9, s{TAG}\nv_mov_b32 v10, 0\ns_mov_b64 exec, 1")
    a(f"buffer_store_dword v9, v10, {S4(sWS)}, s{T0} offen sc1\ns_mov_b64 exec, -1")
    a("s_branch L_attn")

    a.label("L_comp")
    a(f"s_cmp_lg_u32 s{WV}, 0\ns_cbranch_scc1 L_nopf")
    a(f"s_getpc_b64 s[{T2}:{T3}]" if False else f"s_getpc_b64 s[56:57]")
    a.label("L_pc")
    a(f"s_lshl_b32 s{T0}, s{J}, 10\ns_add_u32 s56, s56, s{T0}\ns_addc_u32 s57, s57, 0")
    a("s_sub_u32 s56, s56, L_pc-concat_heads__spectral_fnet__sliding_block__prompt_kernel\ns_subb_u32 s57, s57, 0")
    a("v_lshlrev_b32 v4, 7, v1\nv_mov_b32 v5, s57\nv_add_co_u32 v4, vcc, s56, v4\ns_nop 1\nv_addc_co_u32 v5, vcc, 0, v5, vcc")
    a(f"s_cmp_ge_u32 s{T0}, L_codeend-concat_heads__spectral_fnet__sliding_block__prompt_kernel\ns_cbranch_scc1 L_nopf")
    a("s_mov_b64 exec, 0xff\nglobal_load_dword v252, v[4:5], off\ns_mov_b64 exec, -1")
    a.label("L_nopf")
    a("s_waitcnt lgkmcnt(0)")
    if stamps: a(f"v_mov_b32 v{VST}, 0\nv_writelane_b32 v{VST}, s{T6}, 0")
    stamp(1)
    setup_srd(); setup_masks()
    RT, HP = 4, 5
    a(f"s_and_b32 s{RT}, s{WV}, 1\ns_lshr_b32 s{HP}, s{WV}, 1")
    vXr = 4
    vWr = 8
    a("v_and_b32 v9, 31, v1\nv_lshrrev_b32 v10, 5, v1")
    a("v_lshrrev_b32 v11, 1, v9\nv_xor_b32 v11, v11, v10\nv_and_b32 v11, 7, v11\nv_lshlrev_b32 v11, 4, v11")
    a(f"s_lshl_b32 s{T0}, s{RT}, 12\nv_lshl_add_u32 v{vXr}, v9, 7, v11\nv_add_u32 v{vXr}, s{T0}, v{vXr}")
    for s in range(1, 4): a(f"v_xor_b32 v{vXr+s}, {s*32}, v{vXr}")
    a("v_bfe_u32 v9, v1, 2, 2\nv_and_b32 v10, 3, v1\nv_lshrrev_b32 v11, 4, v1")
    a("v_lshrrev_b32 v12, 1, v11\nv_lshl_add_u32 v12, v12, 3, v9\nv_lshlrev_b32 v12, 7, v12")
    a(f"v_and_b32 v13, 1, v11\nv_lshlrev_b32 v13, 1, v13\nv_lshrrev_b32 v14, 1, v10\nv_add_u32 v13, v13, v14\ns_lshl_b32 s{T0}, s{HP}, 2\nv_add_u32 v13, s{T0}, v13")
    a("v_lshlrev_b32 v14, 1, v9\nv_and_b32 v14, 4, v14\nv_xor_b32 v13, v13, v14\nv_lshl_add_u32 v12, v13, 4, v12")
    a(f"v_and_b32 v13, 1, v10\nv_lshl_add_u32 v12, v13, 3, v12\nv_add_u32 v{vWr}, {L_RING}, v12")
    vKst, vVst, vKl, vVl = 9, 10, 11, 12
    a(f"s_lshl_b32 s{T0}, s{RT}, 12\ns_lshl_b32 s{T1}, s{HP}, 11\ns_add_u32 s{T0}, s{T0}, s{T1}")
    a(f"v_lshlrev_b32 v13, 4, v1\nv_add_u32 v13, s{T0}, v13\nv_add_u32 v{vKl}, {L_OWNK}, v13")
    a(f"s_lshl_b32 s{T1}, s{R}, 13\nv_add_u32 v{vKst}, s{T1}, v13")
    a("v_bfe_u32 v13, v1, 4, 1\nv_lshlrev_b32 v13, 10, v13\nv_lshrrev_b32 v14, 5, v1\nv_lshl_add_u32 v13, v14, 8, v13\nv_and_b32 v14, 15, v1\nv_lshl_add_u32 v13, v14, 4, v13")
    a(f"v_add_u32 v13, s{T0}, v13\nv_add_u32 v{vVl}, {L_OWNV}, v13\nv_add_u32 v{vVst}, s{T1}, v13")
    aK, aV = 16, 32
    FB = 64
    stamp(2)
    for i in range(8):
        barrier()
        if i == 0: stamp(3)
        slot = (i % 4) * 16384
        def reads(s):
            f = FB + 12*s
            a(f"ds_read_b128 v[{f}:{f+3}], v{vXr+s} offset:{i*8192}")
            for seg in range(2):
                for half in range(2):
                    b = f + 4 + 4*seg + 2*half
                    a(f"ds_read_b64_tr_b16 v[{b}:{b+1}], v{vWr} offset:{slot + seg*8192 + (16*s+4*half)*128}")
        def mf(s):
            f = FB + 12*s
            c0 = "0" if (i == 0 and s == 0) else f"v[{aK}:{aK+15}]"
            c1 = "0" if (i == 0 and s == 0) else f"v[{aV}:{aV+15}]"
            a(f"v_mfma_f32_32x32x16_bf16 v[{aK}:{aK+15}], v[{f+4}:{f+7}], v[{f}:{f+3}], {c0}")
            a(f"v_mfma_f32_32x32x16_bf16 v[{aV}:{aV+15}], v[{f}:{f+3}], v[{f+8}:{f+11}], {c1}")
        reads(0); reads(1); reads(2)
        a("s_waitcnt lgkmcnt(10)"); mf(0)
        reads(3)
        a("s_waitcnt lgkmcnt(10)"); mf(1)
        a("s_waitcnt lgkmcnt(5)"); mf(2)
        a("s_waitcnt lgkmcnt(0)"); mf(3)
    stamp(4)
    a("s_nop 15")
    for k in range(8): a(f"v_cvt_pk_bf16_f32 v{aK+k}, v{aK+2*k}, v{aK+2*k+1}")
    a(f"buffer_store_dwordx4 v[{aK}:{aK+3}], v{vKst}, {S4(sKW)}, 0 offen sc1")
    a(f"buffer_store_dwordx4 v[{aK+4}:{aK+7}], v{vKst}, {S4(sKW)}, 0 offen offset:1024 sc1")
    for k in range(8): a(f"v_cvt_pk_bf16_f32 v{aV+k}, v{aV+2*k}, v{aV+2*k+1}")
    a(f"buffer_store_dwordx4 v[{aV}:{aV+3}], v{vVst}, {S4(sVW)}, 0 offen sc1")
    a(f"buffer_store_dwordx4 v[{aV+4}:{aV+7}], v{vVst}, {S4(sVW)}, 0 offen offset:512 sc1")
    a(f"ds_write_b128 v{vKl}, v[{aK}:{aK+3}]\nds_write_b128 v{vKl}, v[{aK+4}:{aK+7}] offset:1024")
    a(f"ds_write_b128 v{vVl}, v[{aV}:{aV+3}]\nds_write_b128 v{vVl}, v[{aV+4}:{aV+7}] offset:512")
    aQ = 48
    def pubkv(at):
        if at == fk_at:
            a(f"s_lshl_b32 s{T0}, s{G}, 5\ns_add_u32 s{T0}, s{T0}, s{R}\ns_lshl_b32 s{T0}, s{T0}, 2\ns_add_u32 s{T0}, s{T0}, s{WV}\ns_lshl_b32 s{T0}, s{T0}, 6\ns_add_u32 s{T0}, s{T0}, {WS_FLAGK}")
            a(f"v_mov_b32 v13, s{TAG}\nv_mov_b32 v14, 0\ns_waitcnt vmcnt(2)\ns_mov_b64 exec, 1")
            a(f"buffer_store_dword v13, v14, {S4(sWS)}, s{T0} offen sc1\ns_mov_b64 exec, -1")
            stamp(6)
        if at == fv_at:
            a(f"s_add_u32 s{T0}, s{T0}, {WS_FLAGV-WS_FLAGK}\ns_waitcnt vmcnt(1)\ns_mov_b64 exec, 1")
            a(f"buffer_store_dword v13, v14, {S4(sWS)}, s{T0} offen sc1\ns_mov_b64 exec, -1")
            stamp(18)
    a("s_waitcnt lgkmcnt(0)")
    stamp(5)
    pubkv(-1)
    for jq in range(4):
        barrier()
        def qreads(ks):
            cc, s = ks >> 2, ks & 3
            f = FB + 8*(ks % 5)
            a(f"ds_read_b128 v[{f}:{f+3}], v{vXr+s} offset:{(2*jq+cc)*8192}")
            for half in range(2):
                a(f"ds_read_b64_tr_b16 v[{f+4+2*half}:{f+5+2*half}], v{vWr} offset:{jq*16384 + cc*8192 + (16*s+4*half)*128}")
        for ks in range(4): qreads(ks)
        for ks in range(8):
            rem = min(3, 7-ks)
            a(f"s_waitcnt lgkmcnt({3*rem})")
            f = FB + 8*(ks % 5)
            c0 = "0" if (jq == 0 and ks == 0) else f"v[{aQ}:{aQ+15}]"
            a(f"v_mfma_f32_32x32x16_bf16 v[{aQ}:{aQ+15}], v[{f+4}:{f+7}], v[{f}:{f+3}], {c0}")
            if ks + 4 < 8: qreads(ks+4)
        pubkv(jq)
    a("s_nop 15")
    for k in range(8): a(f"v_cvt_pk_bf16_f32 v{aQ+k}, v{aQ+2*k}, v{aQ+2*k+1}")
    a(f"v_add_u32 v{vKl}, {L_QF-L_OWNK}, v{vKl}")
    a(f"ds_write_b128 v{vKl}, v[{aQ}:{aQ+3}]\nds_write_b128 v{vKl}, v[{aQ+4}:{aQ+7}] offset:1024")
    a("s_waitcnt lgkmcnt(0)")
    stamp(7)
    barrier()

    a.label("L_attn")
    HH, QB = 7, 10
    a(f"s_and_b32 s{HH}, s{WV}, 3\ns_lshr_b32 s{QB}, s{WV}, 2")
    vA, vK, vK7, vK8, vV, vV7, vV8, vM, vT, vWo = 4, 5, 6, 7, 8, 9, 10, 11, 12, 13
    vZ, vFA = 14, 60
    a(f"s_lshl_b32 s{T0}, s{R}, 13\ns_lshl_b32 s{T1}, s{WV}, 12\ns_add_u32 s{T0}, s{T0}, s{T1}\ns_sub_u32 s{T0}, s{T0}, 32768")
    a(f"v_lshlrev_b32 v{vT}, 4, v1\nv_add_u32 v{vA}, s{T0}, v{vT}")
    a(f"s_add_u32 m0, s{T1}, {L_KREM}\ns_nop 0")
    for ii in range(4): a(f"buffer_load_dwordx4 v{vA}, {S4(sKW)}, 0 offen offset:{ii*1024} sc1 lds")
    a(f"v_mov_b32 v{vZ}, v{vA}")
    a(f"s_lshl_b32 s{T0}, s{QB}, 12\ns_lshl_b32 s{T1}, s{HH}, 10\ns_add_u32 s{T0}, s{T0}, s{T1}")
    a(f"v_add_u32 v{vK8}, s{T0}, v{vT}\nv_add_u32 v{vA}, {L_QF}, v{vK8}")
    a(f"ds_read_b128 v[{vQ}:{vQ+3}], v{vA}")
    a(f"v_add_u32 v{vK}, {L_KREM}, v{vK8}\nv_add_u32 v{vK8}, {L_OWNK}, v{vK8}")
    a(f"s_mul_i32 s{T2}, s{QB}, {L_OWNK-L_KREM-7*4096}\ns_add_u32 s{T2}, s{T2}, {L_KREM+7*4096}\ns_mul_i32 s{T3}, s{QB}, {L_OWNV-L_VREM-7*4096}\ns_add_u32 s{T3}, s{T3}, {L_VREM+7*4096}")
    a(f"s_add_u32 s{T2}, s{T2}, s{T1}\ns_add_u32 s{T3}, s{T3}, s{T1}\nv_add_u32 v{vK7}, s{T2}, v{vT}")
    a(f"v_lshrrev_b32 v{vA}, 5, v1\nv_and_b32 v{vM}, 15, v1\nv_lshlrev_b32 v{vM}, 4, v{vM}\nv_lshl_add_u32 v{vM}, v{vA}, 8, v{vM}")
    a(f"v_add_u32 v{vV7}, s{T3}, v{vM}\nv_add_u32 v{vV}, s{T0}, v{vM}\nv_add_u32 v{vV8}, {L_OWNV}, v{vV}")
    if L_VREM: a(f"v_add_u32 v{vV}, {L_VREM}, v{vV}")
    a(f"s_lshl_b32 s{IMIN}, s{R}, 1\ns_add_u32 s{IMIN}, s{IMIN}, s{QB}")
    a(f"v_lshrrev_b32 v{vA}, 3, v1\nv_lshrrev_b32 v{vWo}, 4, v1\nv_lshlrev_b32 v{vWo}, 1, v{vWo}\nv_xor_b32 v{vWo}, v{vWo}, v1\nv_and_b32 v{vWo}, 7, v{vWo}\nv_lshlrev_b32 v{vWo}, 4, v{vWo}")
    a(f"v_lshl_add_u32 v{vWo}, v{vA}, 10, v{vWo}")
    a(f"s_lshl_b32 s{T0}, s{WV}, 16\ns_lshr_b32 s{T1}, s{J}, 2\ns_lshl_b32 s{T1}, s{T1}, 7\ns_add_u32 s{T0}, s{T0}, s{T1}\nv_add_u32 v{vWo}, s{T0}, v{vWo}")
    WOM = 11
    a(f"s_and_b32 s{T0}, s{WV}, 3\ns_lshl_b32 s{T0}, s{T0}, 13\ns_mul_i32 s{WOM}, s{QB}, {L_WOA-L_WOB}\ns_sub_u32 s{WOM}, {L_WOA}, s{WOM}\ns_add_u32 s{WOM}, s{WOM}, s{T0}")
    a(f"s_cmp_lg_u32 s{WV}, 4\ns_cbranch_scc1 L_pvdone\ns_cmp_eq_u32 s{R}, 0\ns_cbranch_scc1 L_pvdone")
    poll_kv(WS_FLAGV, "L_pv")
    a.label("L_pvdone")
    a(f"s_lshl_b32 s{T1}, s{WV}, 12\ns_add_u32 m0, s{T1}, {L_VREM}")
    a("s_waitcnt vmcnt(0) lgkmcnt(0)")
    stamp(8)
    barrier()
    stamp(9)
    def v_dma():
        for ii in range(4): a(f"buffer_load_dwordx4 v{vZ}, {S4(sVW)}, 0 offen offset:{ii*1024} sc1 lds")
        a(f"s_cmp_lt_u32 s{WV}, 4\ns_cbranch_scc1 L_nofa")
        fa_addr()
        a(f"buffer_load_dword v{vFA}, v{vFA+1}, {S4(sWS)}, s{T2} offen sc1")
        a.label("L_nofa")
    def fa_addr():
        a(f"v_lshrrev_b32 v{vFA+1}, 1, v1\nv_lshlrev_b32 v{vFA+1}, 9, v{vFA+1}\nv_and_b32 v{vFA}, 1, v1\nv_lshl_add_u32 v{vFA+1}, v{vFA}, 6, v{vFA+1}")
        a(f"s_lshr_b32 s{T2}, s{LB}, 4\ns_add_u32 s{T2}, s{T2}, {WS_FLAGA}")
    def kdst(i): return vS + 16*(i+1) if i < 8 else vO
    for i in range(9):
        if i < 7: a(f"ds_read_b128 v[{kdst(i)}:{kdst(i)+3}], v{vK} offset:{i*4096}")
        else: a(f"ds_read_b128 v[{kdst(i)}:{kdst(i)+3}], v{vK7 if i == 7 else vK8}")
    v_dma()
    for i in range(9):
        a(f"s_waitcnt lgkmcnt({8-i})")
        a(f"v_mfma_f32_32x32x16_bf16 v[{vS+16*i}:{vS+16*i+15}], v[{kdst(i)}:{kdst(i)+3}], v[{vQ}:{vQ+3}], 0")
    a(f"s_cmp_ge_u32 s{IMIN}, 8\ns_cbranch_scc1 L_nomiss\ns_nop 15")
    for i in range(8):
        if i: a(f"s_cmp_ge_u32 s{IMIN}, {8-i}\ns_cbranch_scc1 L_nomiss")
        for r in range(16): a(f"v_mov_b32 v{vS+16*i+r}, 0xf149f2ca")
    a.label("L_nomiss")
    wo_issued = [0]
    def issue_wo():
        k = wo_issued[0]; wo_issued[0] += 1
        a(f"s_add_u32 m0, s{WOM}, {k*1024}\ns_mov_b32 s{T0}, {k*8192}")
        a(f"buffer_load_dwordx4 v{vWo}, {S4(sWO)}, s{T0} offen lds")
    a("s_nop 7")
    a(f"v_max3_f32 v{vM}, v{vS+16}, v{vS+17}, v{vS+18}\nv_max3_f32 v{vT}, v{vS+19}, v{vS+20}, v{vS+21}")
    rest = list(range(vS+22, vS+128))
    tog = 0
    while rest:
        x, y = rest[0], rest[1]; rest = rest[2:]
        d = (vM, vT)[tog]; tog ^= 1
        a(f"v_max3_f32 v{d}, v{d}, v{x}, v{y}")
    for r in range(16):
        a(f"v_cndmask_b32 v{vS+128+r}, v{vS+r}, v{vS+128+r}, s[{MSK+2*r}:{MSK+2*r+1}]")
    for r in range(0, 16, 2):
        d = (vM, vT)[tog]; tog ^= 1
        a(f"v_max3_f32 v{d}, v{d}, v{vS+128+r}, v{vS+128+r+1}")
    a(f"v_max_f32 v{vM}, v{vM}, v{vT}\ns_nop 0\nv_mov_b32 v{vT}, v{vM}\ns_nop 1\nv_permlane32_swap_b32 v{vM}, v{vT}\ns_nop 1\nv_max_f32 v{vM}, v{vM}, v{vT}")
    vMM = 2
    a(f"v_mul_f32 v{vMM}, s{CEXP}, v{vM}")
    stamp(10)
    def exp_tile(i, hooks):
        b = vS + 16*i
        seq = []
        for k in range(8):
            seq.append(f"v_pk_fma_f32 v[{b+2*k}:{b+2*k+1}], v[{b+2*k}:{b+2*k+1}], s[{CEXP}:{CEXP+1}], v[{vMM}:{vMM+1}] op_sel_hi:[1,1,0] neg_lo:[0,0,1] neg_hi:[0,0,1]")
        out = []
        out.append(seq[0])
        for k in range(8):
            if k + 1 < 8: out.append(seq[k+1])
            out.append(f"v_exp_f32 v{b+2*k}, v{b+2*k}")
            out.append(f"v_exp_f32 v{b+2*k+1}, v{b+2*k+1}")
            if k >= 1: out.append(f"v_cvt_pk_bf16_f32 v{b+k-1}, v{b+2*k-2}, v{b+2*k-1}")
        out.append("s_nop 0")
        out.append(f"v_cvt_pk_bf16_f32 v{b+7}, v{b+14}, v{b+15}")
        n = len(out)
        hk = dict(hooks)
        for idx, ins in enumerate(out):
            if idx in hk: hk[idx]()
            a(ins)
    def vread(i, buf):
        def f():
            a(f"s_mov_b64 exec, s[{VMASK}:{VMASK+1}]")
            for st in range(2):
                d = vVB + 8*buf + 4*st
                if i < 7: a(f"ds_read_b128 v[{d}:{d+3}], v{vV} offset:{i*4096+st*512}")
                else: a(f"ds_read_b128 v[{d}:{d+3}], v{vV7 if i == 7 else vV8} offset:{st*512}")
            a("s_mov_b64 exec, -1")
        return f
    first_pv = [True]
    def pv(i, buf, st, wait=None, preg=None):
        def f():
            if wait is not None: a(f"s_waitcnt lgkmcnt({wait})")
            p = (vS + 16*i if preg is None else preg) + 4*st
            c = "0" if first_pv[0] else f"v[{vO}:{vO+15}]"
            first_pv[0] = False
            a(f"v_mfma_f32_32x32x16_bf16 v[{vO}:{vO+15}], v[{vVB+8*buf+4*st}:{vVB+8*buf+4*st+3}], v[{p}:{p+3}], {c}")
        return f
    def seq(*fs):
        def f():
            for x in fs: x()
        return f
    exp_tile(8, [(10, issue_wo), (28, vread(8, 0))])
    for k in range(8):
        a(f"v_bfi_b32 v{vS+k}, v{vPM+k}, 0, v{vS+128+k}\nv_and_b32 v{vS+128+k}, v{vPM+k}, v{vS+128+k}")
    exp_tile(7, [(4, pv(8, 0, 0, wait=1)), (14, issue_wo), (20, pv(8, 0, 1, wait=0))])
    a(f"s_waitcnt vmcnt({wo_issued[0]})")
    stamp(11)
    barrier()
    a(f"s_mov_b32 s{ZPEND}, 0")
    a(f"s_cmp_lt_u32 s{WV}, 4\ns_cbranch_scc1 L_noz")
    def zaddr():
        a(f"v_bfe_u32 v{vZ}, v1, 3, 1\nv_lshlrev_b32 v{vZ}, 9, v{vZ}\nv_lshrrev_b32 v{vA}, 4, v1\nv_lshl_add_u32 v{vZ}, v{vA}, 7, v{vZ}")
        a(f"v_and_b32 v{vA}, 1, v{vA}\nv_xor_b32 v{vA}, v{vA}, v1\nv_and_b32 v{vA}, 7, v{vA}\nv_lshl_add_u32 v{vZ}, v{vA}, 4, v{vZ}")
        a(f"s_lshl_b32 s{T0}, s{SRC}, 14\ns_lshl_b32 s{T1}, s{LB}, 1\ns_add_u32 s{T0}, s{T0}, s{T1}\ns_add_u32 s{T0}, s{T0}, {WS_ZW}")
        a(f"s_add_u32 m0, s{T1}, {L_AUX}")
    def zdma():
        a("s_nop 0")
        for ii in range(4): a(f"buffer_load_dwordx4 v{vZ}, {S4(sWS)}, s{T0} offen offset:{ii*1024} sc1 lds")
    def flaga_check(lab_fail):
        a(f"v_cmp_ne_u32 vcc, s{TAG}, v{vFA}\ns_nop 0\ns_cbranch_vccnz {lab_fail}")
    flaga_check("L_zfail")
    zaddr(); zdma()
    a("s_branch L_noz")
    a.label("L_zfail")
    a(f"s_mov_b32 s{ZPEND}, 1")
    a.label("L_noz")
    vread(0, 1)()
    vread(7, 0)()
    exp_tile(6, [(4, pv(0, 1, 0, wait=3)), (9, issue_wo), (13, pv(0, 1, 1, wait=2)), (20, pv(7, 0, 0, wait=1)), (21, vread(6, 1)), (27, pv(7, 0, 1, wait=2)), (30, issue_wo)])
    prev, pbuf = 6, 1
    for i in (5, 4, 3, 2, 1):
        hooks = [(2, vread(i, pbuf ^ 1)), (6, pv(prev, pbuf, 0, wait=3)), (20, pv(prev, pbuf, 1, wait=2))]
        if wo_issued[0] < 8: hooks.append((12, issue_wo))
        exp_tile(i, hooks)
        prev, pbuf = i, pbuf ^ 1
    assert wo_issued[0] == 8
    a("s_nop 0")
    pv(1, pbuf, 0, wait=1)(); pv(1, pbuf, 1, wait=0)()
    a(f"s_lshl_b32 s{T0}, s{R}, 1\ns_add_u32 s{T0}, s{T0}, s{QB}\ns_lshl_b32 s{T1}, s{T0}, 15\ns_lshl_b32 s{T2}, s{G}, 2\ns_add_u32 s{T2}, s{T2}, s{HH}\ns_lshl_b32 s{T3}, s{T2}, 9")
    a(f"s_add_u32 s{T1}, s{T1}, s{T3}\ns_add_u32 s{T1}, s{T1}, {WS_OW}")
    a(f"s_lshl_b32 s{T0}, s{T0}, 5\ns_add_u32 s{T0}, s{T0}, s{T2}\ns_lshl_b32 s{T0}, s{T0}, 6\ns_add_u32 s{T5}, s{T0}, {WS_FLAG2}")
    a(f"v_bfe_u32 v{vA}, v1, 4, 1\nv_lshlrev_b32 v{vA}, 14, v{vA}\nv_lshrrev_b32 v{vT}, 5, v1\nv_lshl_add_u32 v{vA}, v{vT}, 8, v{vA}\nv_and_b32 v{vT}, 15, v1\nv_lshl_add_u32 v{vA}, v{vT}, 4, v{vA}")
    a("s_nop 4")
    a(f"v_rcp_f32 v{vT}, v{vO+8}\ns_nop 0")
    for k in range(8): a(f"v_mul_f32 v{vO+k}, v{vO+k}, v{vT}")
    for k in range(4): a(f"v_cvt_pk_bf16_f32 v{vO+k}, v{vO+2*k}, v{vO+2*k+1}")
    stamp(12)
    def flag2_store():
        a(f"v_mov_b32 v252, s{TAG}\nv_mov_b32 v253, 0\ns_waitcnt vmcnt(0)\ns_mov_b64 exec, 1")
        a(f"buffer_store_dword v252, v253, {S4(sWS)}, s{T5} offen sc1\ns_mov_b64 exec, -1")
    a(f"s_cmp_lt_u32 s{WV}, 4\ns_cbranch_scc1 L_oproj")

    a(f"s_cmp_eq_u32 s{ZPEND}, 0\ns_cbranch_scc1 L_zok")
    a(f"buffer_store_dwordx4 v[{vO}:{vO+3}], v{vA}, {S4(sWS)}, s{T1} offen sc1")
    flag2_store()
    fa_addr()
    a(f"s_mov_b32 s{T4}, 0")
    a.label("L_pa")
    a(f"buffer_load_dword v{vFA}, v{vFA+1}, {S4(sWS)}, s{T2} offen sc1\ns_waitcnt vmcnt(0)")
    flaga_check("L_pa_retry")
    a("s_branch L_pa_ok")
    a.label("L_pa_retry")
    a(f"s_add_u32 s{T4}, s{T4}, 1\ns_cmp_lt_u32 s{T4}, {POLL_MAX}\ns_cbranch_scc1 L_pa")
    a.label("L_pa_ok")
    zaddr(); a("s_nop 0"); zdma()
    a("s_waitcnt vmcnt(0)\ns_branch L_zgo")
    a.label("L_zok")
    a(f"buffer_store_dwordx4 v[{vO}:{vO+3}], v{vA}, {S4(sWS)}, s{T1} offen sc1")
    a("s_waitcnt vmcnt(7)")
    a.label("L_zgo")
    a("v_bfe_u32 v9, v1, 2, 2\nv_and_b32 v10, 3, v1\nv_and_b32 v12, 15, v1\nv_lshrrev_b32 v13, 4, v1")
    a("v_lshrrev_b32 v4, 1, v9\nv_mul_u32_u24 v5, 17, v4\nv_lshrrev_b32 v6, 1, v13\nv_lshl_add_u32 v5, v6, 6, v5\nv_and_b32 v6, 1, v13\nv_lshl_add_u32 v5, v6, 3, v5\nv_lshl_add_u32 v5, v10, 1, v5")
    a(f"v_and_b32 v7, 1, v9\nv_lshlrev_b32 v5, 4, v5\nv_lshl_add_u32 v5, v7, 3, v5\ns_lshl_b32 s{T1}, s{LB}, 1\ns_add_u32 s{T1}, s{T1}, {L_AUX}\nv_add_u32 v5, s{T1}, v5\nv_xor_b32 v6, 16, v5")
    D0 = 64
    for n2lo in range(2):
        for dB1 in range(2):
            for half in range(2):
                d = D0 + 8*n2lo + 4*dB1 + 2*half
                a(f"ds_read_b64_tr_b16 v[{d}:{d+1}], v{5+dB1} offset:{n2lo*2048+half*512}")
    a(f"s_lshr_b32 s{T2}, s{LB}, 11\ns_and_b32 s{T3}, s{T2}, 1")
    a(f"v_and_b32 v8, 2, v13\nv_xor_b32 v8, v8, v12\nv_xor_b32 v11, s{T3}, v13\nv_lshl_or_b32 v8, v11, 4, v8\nv_lshlrev_b32 v8, 3, v8\nv_add_u32 v8, s{T1}, v8")
    a("v_xor_b32 v11, 32, v8\nv_xor_b32 v14, 64, v8\nv_xor_b32 v15, 96, v8")
    C1 = 80
    for n2lo in range(2):
        for dB1 in range(2):
            a(f"s_waitcnt lgkmcnt({6-4*n2lo-2*dB1})")
            for pl in range(2):
                d = C1 + 16*n2lo + 8*dB1 + 4*pl; f = D0 + 8*n2lo + 4*dB1
                a(f"v_mfma_f32_16x16x32_bf16 v[{d}:{d+3}], v[{f}:{f+3}], v[{cF+4*pl}:{cF+4*pl+3}], 0")
    a("s_nop 4")
    Y = 112
    for n2lo in range(2):
        for dB1 in range(2):
            for r in range(4):
                zr = C1 + 16*n2lo + 8*dB1 + r; zi = zr + 4
                c = cTW + 4*dB1 + r; s_ = c + 8
                dB0, dC = r >> 1, r & 1
                y = Y + 8*n2lo + 4*dC + 2*dB1 + dB0
                a(f"v_mul_f32 v128, v{zr}, v{c}\nv_mul_f32 v129, v{zi}, v{c}\nv_fmac_f32 v128, v{zi}, v{s_}\nv_fma_f32 v129, -v{zr}, v{s_}, v129")
                a(f"v_cvt_pk_bf16_f32 v{y}, v128, v129")
    a("s_nop 1")
    C2 = 132
    for n2lo in range(2):
        for dC in range(2):
            for pl in range(2):
                d = C2 + 16*n2lo + 8*dC + 4*pl; y = Y + 8*n2lo + 4*dC; m = cM2 + 8*dC + 4*pl
                a(f"v_mfma_f32_16x16x32_bf16 v[{d}:{d+3}], v[{y}:{y+3}], v[{m}:{m+3}], 0")
    a("v_lshrrev_b32 v4, 1, v10\nv_and_b32 v5, 1, v10\nv_mul_u32_u24 v5, 34, v5\nv_or_b32 v4, v4, v5")
    a(f"v_xor_b32 v5, s{T2}, v9\nv_lshl_or_b32 v4, v5, 2, v4\nv_and_b32 v5, 1, v13\nv_lshl_or_b32 v4, v5, 4, v4\nv_lshl_or_b32 v4, v9, 6, v4")
    a(f"v_lshlrev_b32 v4, 3, v4\nv_lshl_add_u32 v4, v13, 12, v4\nv_add_u32 v4, {L_AUX}, v4")
    a("v_xor_b32 v5, 128, v4\nv_xor_b32 v6, 16, v4\nv_xor_b32 v7, 144, v4")
    wa2 = {(0,0):8, (0,1):11, (1,0):14, (1,1):15}
    for n2lo in range(2):
        for dC in range(2):
            for pl in range(2):
                d = C2 + 16*n2lo + 8*dC + 4*pl
                a(f"v_cvt_pk_bf16_f32 v{d}, v{d}, v{d+1}\nv_cvt_pk_bf16_f32 v{d+1}, v{d+2}, v{d+3}")
                a(f"ds_write_b64 v{wa2[(dC,pl)]}, v[{d}:{d+1}] offset:{n2lo*2048+dC*1024+pl*512}")
    a(f"s_cmp_lg_u32 s{ZPEND}, 0\ns_cbranch_scc1 L_f2skip")
    flag2_store()
    a.label("L_f2skip")
    a("s_waitcnt lgkmcnt(0)")
    stamp(13)
    barrier()
    for k in range(4):
        for half in range(2):
            a(f"ds_read_b64_tr_b16 v[{D0+4*k+2*half}:{D0+4*k+2*half+1}], v{4+k} offset:{half*2048}")
    a(f"s_cmp_lg_u32 s2, 0\ns_cbranch_scc1 L_noep\ns_cmp_lg_u32 s{WV}, 4\ns_cbranch_scc1 L_noep")
    a(f"v_mov_b32 v252, s{TAG}\nv_mov_b32 v253, {WS_EPOCH}\ns_mov_b64 exec, 1\nbuffer_store_dword v252, v253, {S4(sWS)}, 0 offen sc1\ns_mov_b64 exec, -1")
    a.label("L_noep")
    a(f"v_and_b32 v8, 7, v12\nv_lshlrev_b32 v8, 19, v8\nv_lshrrev_b32 v11, 3, v12\nv_lshl_add_u32 v8, v11, 9, v8\nv_lshl_add_u32 v8, v13, 4, v8")
    a(f"s_lshl_b32 s{T0}, s{K1}, 11\ns_lshr_b32 s{T1}, s{LB}, 4\ns_add_u32 s{T0}, s{T0}, s{T1}")
    for k in range(4):
        a(f"s_waitcnt lgkmcnt({6-2*k})")
        a(f"v_mfma_f32_16x16x32_bf16 v[{C1+4*k}:{C1+4*k+3}], v[{D0+4*k}:{D0+4*k+3}], v[{cG3}:{cG3+3}], 0")
    a("s_nop 7")
    for pp in range(2):
        b = C1 + 8*pp
        for k in range(4): a(f"v_cvt_pk_bf16_f32 v{b+k}, v{b+2*k}, v{b+2*k+1}")
        a(f"buffer_store_dwordx4 v[{b}:{b+3}], v8, {S4(sOUT)}, s{T0} offen offset:{pp*64}")
    stamp(14)
    a("s_branch L_fin")

    a.label("L_oproj")
    a(f"buffer_store_dwordx4 v[{vO}:{vO+3}], v{vA}, {S4(sWS)}, s{T1} offen sc1")
    RP = 4
    a(f"s_lshl_b32 s{RP}, s{XCD}, 2\ns_and_b32 s{T0}, s{J}, 3\ns_add_u32 s{RP}, s{RP}, s{T0}")
    a("v_bfe_u32 v9, v1, 2, 2\nv_and_b32 v10, 3, v1\nv_lshrrev_b32 v13, 4, v1")
    a("v_lshrrev_b32 v4, 1, v13\nv_and_b32 v5, 1, v13\nv_lshlrev_b32 v4, 4, v4\nv_lshl_add_u32 v4, v5, 2, v4\nv_add_u32 v4, v4, v9\nv_lshlrev_b32 v4, 7, v4")
    a("v_lshrrev_b32 v6, 1, v9\nv_lshl_add_u32 v6, v5, 1, v6\nv_lshlrev_b32 v6, 1, v6\nv_lshrrev_b32 v7, 1, v10\nv_xor_b32 v6, v6, v7\nv_lshl_add_u32 v4, v6, 4, v4")
    a(f"v_and_b32 v7, 1, v10\nv_lshl_add_u32 v4, v7, 3, v4\nv_add_u32 v4, {L_WOA}, v4")
    a("v_xor_b32 v5, 32, v4\nv_xor_b32 v6, 64, v4\nv_xor_b32 v7, 96, v4")
    a(f"s_lshl_b32 s{T0}, s{RP}, 2\ns_add_u32 s{T0}, s{T0}, s{WV}")
    a(f"s_lshl_b32 s{T1}, s{T0}, 14\ns_add_u32 s{T1}, s{T1}, {WS_OW}\nv_lshlrev_b32 v8, 4, v1\nv_add_u32 v8, s{T1}, v8")
    a(f"s_lshr_b32 s{T1}, s{T0}, 1\ns_lshl_b32 s{T1}, s{T1}, 11\ns_add_u32 s{T4}, s{T1}, {WS_FLAG2}\nv_lshlrev_b32 v11, 6, v1")
    a(f"s_lshl_b32 s{T0}, s{T0}, 15\ns_lshr_b32 s{T1}, s{J}, 2\ns_lshl_b32 s{T1}, s{T1}, 7\ns_add_u32 s{T0}, s{T0}, s{T1}\ns_add_u32 s{RP}, s{T0}, 1024")
    a("v_and_b32 v12, 15, v1\nv_lshlrev_b32 v12, 11, v12\nv_and_b32 v14, 1, v13\nv_lshl_add_u32 v12, v14, 5, v12\nv_lshrrev_b32 v14, 1, v13\nv_lshl_add_u32 v12, v14, 4, v12")
    a("v_mov_b32 v15, v11")
    vT2, vM2 = 14, 9
    a(f"v_mov_b32 v{vT2}, s{TAG}\nv_mov_b32 v{vM2}, 0\ns_waitcnt vmcnt(0)\ns_mov_b64 exec, 1")
    a(f"buffer_store_dword v{vT2}, v{vM2}, {S4(sWS)}, s{T5} offen sc1\ns_mov_b64 exec, -1")
    stamp(13)
    barrier()
    WF = 128
    OF = 64
    ACC = 16
    def wreads(jj, nts=range(4)):
        b = WF + 16*(jj & 1)
        for nt in nts:
            for half in range(2):
                a(f"ds_read_b64_tr_b16 v[{b+4*nt+2*half}:{b+4*nt+2*half+1}], v{4+nt} offset:{(32*(jj&7)+8*half)*128}")
    wreads(0)
    a(f"s_mov_b32 exec_hi, 0\ns_mov_b32 s{T3}, 0")
    a.label("L_p2")
    a(f"buffer_load_dword v10, v15, {S4(sWS)}, s{T4} offen sc1\ns_waitcnt vmcnt(0)")
    a(f"v_cmp_ne_u32 vcc, s{TAG}, v10\ns_add_u32 s{T3}, s{T3}, 1\ns_cbranch_vccz L_p2ok")
    a(f"s_cmp_lt_u32 s{T3}, {POLL_MAX}\ns_cbranch_scc1 L_p2")
    a.label("L_p2ok")
    a("s_mov_b64 exec, -1")
    stamp(14)
    a(f"s_mov_b32 s{T1}, 4096\ns_mov_b32 s{T2}, 8192\ns_mov_b32 s{T3}, 12288")
    for jj in range(16):
        so = ("0", f"s{T1}", f"s{T2}", f"s{T3}")[jj >> 2]
        a(f"buffer_load_dwordx4 v[{OF+4*jj}:{OF+4*jj+3}], v8, {S4(sWS)}, {so} offen offset:{(jj&3)*1024} sc1")
    for jj in range(16):
        if jj == 7:
            pass
        if jj + 1 < 16:
            if jj + 1 == 8:
                for nt in range(4): a(f"v_add_u32 v{4+nt}, {(L_WOB-L_WOA) & 0xffffffff:#x}, v{4+nt}")
            wreads(jj+1, range(3))
            a(f"s_waitcnt vmcnt({15-jj}) lgkmcnt(6)")
        else:
            a("s_waitcnt vmcnt(0) lgkmcnt(0)")
        b = WF + 16*(jj & 1)
        for nt in range(4):
            c = "0" if jj == 0 else f"v[{ACC+4*nt}:{ACC+4*nt+3}]"
            a(f"v_mfma_f32_16x16x32_bf16 v[{ACC+4*nt}:{ACC+4*nt+3}], v[{b+4*nt}:{b+4*nt+3}], v[{OF+4*jj}:{OF+4*jj+3}], {c}")
            if nt == 0 and jj + 1 < 16: wreads(jj+1, [3])
    a("s_nop 7")
    for k in range(8): a(f"v_cvt_pk_bf16_f32 v{ACC+k}, v{ACC+2*k}, v{ACC+2*k+1}")
    a("s_nop 1")
    for p in range(2):
        b = ACC + 4*p
        a(f"v_permlane16_swap_b32 v{b}, v{b+2}\nv_permlane16_swap_b32 v{b+1}, v{b+3}")
    for p in range(2):
        b = ACC + 4*p
        a(f"buffer_store_dwordx4 v[{b}:{b+3}], v12, {S4(sOUT)}, s{RP} offen offset:{p*64}")
    stamp(15)
    a.label("L_fin")
    if stamps:
        a("s_waitcnt vmcnt(0)")
        stamp(16)
        a(f"s_memrealtime s[{T6}:{T7}]\ns_waitcnt lgkmcnt(0)\nv_writelane_b32 v{VST}, s{T6}, 17")
        a(f"s_lshl_b32 s{T0}, s2, 3\ns_add_u32 s{T0}, s{T0}, s{WV}\ns_lshl_b32 s{T0}, s{T0}, 8\ns_add_u32 s{T0}, s{T0}, {WS_STAMP}")
        a(f"v_lshlrev_b32 v4, 2, v1\nbuffer_store_dword v{VST}, v4, {S4(sWS)}, s{T0} offen")
    a.label("L_end")
    a("s_endpgm")
    a.label("L_codeend")
    a(".fill 256, 4, 0xBF800000")
    hdr = open("concat_heads__spectral_fnet__sliding_block__prompt.s.ref").read().split("; Override")[0]
    return kernel_file([dict(name=NAME+"_kernel", grid=256, block=512, lds=163840, body=a.text(), vgpr=256, sgpr=102, accum=256)], hdr)

if __name__ == "__main__":
    open("concat_heads__spectral_fnet__sliding_block__prompt.s", "w").write(gen())
    open("k_st.s", "w").write(gen(stamps=True))
```

```python
import sys, math, struct
from asmlib import *

def f2u(x): return struct.unpack("<I", struct.pack("<f", x))[0]
KN = NAME + "_kernel"
WS_EPOCH = 0
FS = 64
WS_FLAGK = 0x10000
WS_FLAGV = 0x20000
WS_FLAG2 = 0x30000
WS_FLAGA = 0x50000
WS_STAMP = 0x60000
WS_FLAG2F = 0xE0000
WS_KW = 1 << 20
WS_VW = 3 << 20
WS_OW = 5 << 20
WS_ZW = 8 << 20
WS_USED = 11 << 20
L_X = 0; L_RING = 65536; L_OWNK = 131072; L_OWNV = 139264; L_AUX = 147456
L_VREM = L_X; L_QF = L_RING + 4096
L_WO = L_RING
L_CNTZ = L_RING + 7168; L_CNTW = L_X + 32768; L_CNTA = L_X + 32768 + 64
POLL_MAX = 20000
NEG = 0xf149f2ca

def gen(stamps=False, rotmode="xcd+3", qsched={5:[0],6:[1],7:[2],8:[3]}, fk_at=0, vst_at=0, fv_at=2, qpf=None, zpark=False, pp={11:'mtgM'}, light=False, preclr=0, osent=True, zlate=True, force_ofb=False, npre=9, ilv_st=False, ilv_ds=True, pdepth=1, psleep=2, mallpf=0, late_pieces=True, vsrv=True, npre_b14=5, fine=False, force_fb=False, prio=True, b14_after=4):
    a = Asm()
    sX, sW, sAX, sWO, sOUT, sWS, sKW, sVW = 16, 20, 24, 28, 32, 36, 40, 44
    XCD, J, R, G, WV, ROT, TAG = 48, 49, 50, 51, 52, 53, 54
    T0, T1, T2, T3, T4, T5 = 55, 56, 57, 58, 59, 60
    LB = 61; KOFF = 62; IMIN = 63
    MSK = 64; VMASK = 96; T6, T7 = 100, 101
    K1, SRC, SGN, HH, QB, WOM = 4, 5, 6, 7, 10, 11
    RT, HP, RP = 4, 5, 4
    ZT, ZM0, ZM1 = 98, 99, 3
    ZS, ZA, ZB = 12, 13, 14
    def srd(s, ptr, size):
        a(f"s_mov_b32 s{s}, s{ptr}\ns_mov_b32 s{s+1}, s{ptr+1}\ns_mov_b32 s{s+2}, {size:#x}\ns_mov_b32 s{s+3}, 0x20000")
    def S4(s): return f"s[{s}:{s+3}]"
    VST = 255
    def stamp(idx):
        if stamps and not light:
            a(f"s_memtime s[{T6}:{T7}]\ns_waitcnt lgkmcnt(0)\nv_writelane_b32 v{VST}, s{T6}, {idx}")
    def rstamp(idx):
        if stamps and not light:
            a(f"s_memrealtime s[{T6}:{T7}]\ns_waitcnt lgkmcnt(0)\nv_writelane_b32 v{VST}, s{T6}, {idx}")
    def barrier(): a("s_barrier")
    def flag_store(soff, wait=None):
        a(f"v_mov_b32 v252, s{TAG}\nv_mov_b32 v253, 0")
        if wait is not None: a(f"s_waitcnt vmcnt({wait})")
        a(f"s_mov_b64 exec, 1\nbuffer_store_dword v252, v253, {S4(sWS)}, {soff} offen sc1\ns_mov_b64 exec, -1")
    def poll(lab, vaddr, soff, regs, cnt, first=False):
        n = len(regs)
        a(f"s_mov_b32 s{cnt}, 0")
        if first: a(f"buffer_load_dword v{regs[0]}, v{vaddr}, {S4(sWS)}, {soff} offen sc1")
        for k in range(1, n):
            a(f"buffer_load_dword v{regs[k]}, v{vaddr}, {S4(sWS)}, {soff} offen sc1")
            if k < n - 1 and psleep: a(f"s_sleep {psleep}")
        a.label(lab)
        for k in range(n):
            a(f"s_waitcnt vmcnt({n-1})\nv_cmp_ne_u32 vcc, s{TAG}, v{regs[k]}\ns_add_u32 s{cnt}, s{cnt}, 1\ns_cbranch_vccz {lab}ok")
            a(f"buffer_load_dword v{regs[k]}, v{vaddr}, {S4(sWS)}, {soff} offen sc1")
            if n > 1 and psleep: a(f"s_sleep {psleep}")
        a(f"s_cmp_lt_u32 s{cnt}, {POLL_MAX}\ns_cbranch_scc1 {lab}")
        a.label(lab + "ok")
        a("s_mov_b64 exec, -1")
    vS = 64; vO = 208; vVB = 224; vPM = 240; vQ = 248
    cF, cTW, cM2, cG3, cA1 = 16, 24, 40, 56, 64

    a("s_cmp_ge_u32 s2, 256\ns_cbranch_scc1 L_end")
    a("s_load_dwordx4 s[4:7], s[0:1], 40")
    a("s_load_dwordx2 s[8:9], s[0:1], 80")
    a("s_load_dwordx2 s[10:11], s[0:1], 0")
    a("s_load_dwordx4 s[12:15], s[0:1], 56")
    if stamps: a(f"s_memrealtime s[{T6}:{T7}]")
    a("v_lshrrev_b32 v2, 6, v0\nv_and_b32 v1, 63, v0")
    a(f"s_and_b32 s{XCD}, s2, 7\ns_lshr_b32 s{J}, s2, 3")
    a(f"v_readfirstlane_b32 s{WV}, v2")
    a(f"s_lshr_b32 s{R}, s{XCD}, 1\ns_lshl_b32 s{R}, s{R}, 3\ns_and_b32 s{T0}, s{J}, 7\ns_add_u32 s{R}, s{R}, s{T0}")
    a(f"s_and_b32 s{G}, s{XCD}, 1\ns_lshl_b32 s{G}, s{G}, 2\ns_lshr_b32 s{T0}, s{J}, 3\ns_add_u32 s{G}, s{G}, s{T0}")
    a(f"s_cmp_lt_u32 s{WV}, 4\ns_cbranch_scc1 L_comp")

    vXa, vXb, vWa, vWb, vAx = 4, 5, 6, 7, 8
    a(f"s_sub_u32 s{T1}, s{WV}, 4")
    if rotmode == "xcd+3":
        a(f"s_add_u32 s{ROT}, s{R}, s{G}\ns_and_b32 s{ROT}, s{ROT}, 3\ns_add_u32 s{ROT}, s{ROT}, s{XCD}")
    elif rotmode == "xcd+2g1":
        a(f"s_add_u32 s{ROT}, s{R}, s{G}\ns_and_b32 s{ROT}, s{ROT}, 1\ns_lshl_b32 s{ROT}, s{ROT}, 1\ns_add_u32 s{ROT}, s{ROT}, s{XCD}")
    elif rotmode == "4grp":
        a(f"s_add_u32 s{ROT}, s{R}, s{G}\ns_and_b32 s{ROT}, s{ROT}, 3\ns_lshl_b32 s{ROT}, s{ROT}, 1")
    else:
        a(f"s_mov_b32 s{ROT}, 0")
    a(f"s_lshl_b32 s{T2}, s{T1}, 4")
    a(f"s_lshl_b32 s{T0}, s{R}, 6\ns_add_u32 s{T0}, s{T0}, s{T2}")
    a("v_lshrrev_b32 v3, 3, v1")
    a(f"v_add_u32 v9, s{T2}, v3\nv_add_u32 v10, s{T0}, v3")
    a("v_lshrrev_b32 v11, 1, v3\nv_xor_b32 v11, v11, v1\nv_and_b32 v11, 7, v11\nv_lshlrev_b32 v11, 4, v11")
    a(f"v_lshl_add_u32 v{vXa}, v10, 10, v11\nv_xor_b32 v{vXb}, 64, v{vXa}\nv_add_u32 v{vXb}, 8192, v{vXb}")
    a("v_lshlrev_b32 v11, 1, v3\nv_and_b32 v11, 4, v11\nv_xor_b32 v11, v11, v1\nv_and_b32 v11, 7, v11\nv_lshlrev_b32 v11, 4, v11")
    a(f"v_mul_u32_u24 v9, 3072, v9\ns_lshl_b32 s{T0}, s{G}, 7\nv_add3_u32 v{vWa}, v9, v11, s{T0}\nv_add_u32 v{vWb}, {8*3072}, v{vWa}")
    a(f"s_lshl_b32 s{LB}, s{T1}, 11")
    a("s_waitcnt lgkmcnt(0)")
    srd(sX, 4, 0x200000); srd(sW, 6, 0x180000)
    ledger = []
    def led(name, n): ledger.append((name, n))
    def wait_for(name):
        idx = [k for k, (nm, _) in enumerate(ledger) if nm == name][-1]
        a(f"s_waitcnt vmcnt({sum(n for _, n in ledger[idx+1:])})")
    def chunk_off(i):
        a(f"s_add_u32 s{T2}, s{ROT}, {i}\ns_and_b32 s{T2}, s{T2}, 7\ns_mul_i32 s{T3}, s{T2}, {64*3072}")
    def issue_kv(i):
        slot = L_RING + (i % 4) * 16384
        chunk_off(i)
        a(f"s_lshl_b32 s{T2}, s{T2}, 7")
        a(f"s_add_u32 m0, s{LB}, {L_X + i*8192}\ns_add_u32 s{T3}, s{T3}, 1024")
        a(f"buffer_load_dwordx4 v{vXa}, {S4(sX)}, s{T2} offen lds")
        a(f"s_add_u32 m0, s{LB}, {L_X + i*8192 + 1024}\ns_add_u32 s{T0}, s{T3}, 1024")
        a(f"buffer_load_dwordx4 v{vXb}, {S4(sX)}, s{T2} offen lds")
        for seg, sr in ((0, T3), (1, T0)):
            for ii in range(2):
                a(f"s_add_u32 m0, s{LB}, {slot + seg*8192 + ii*1024}\ns_nop 0")
                a(f"buffer_load_dwordx4 v{(vWa, vWb)[ii]}, {S4(sW)}, s{sr} offen lds")
        led(f"c{i}", 6)
    def issue_q(jq):
        for cc in range(2):
            chunk_off(2*jq + cc)
            for ii in range(2):
                a(f"s_add_u32 m0, s{LB}, {L_RING + jq*16384 + cc*8192 + ii*1024}\ns_nop 0")
                a(f"buffer_load_dwordx4 v{(vWa, vWb)[ii]}, {S4(sW)}, s{T3} offen lds")
        led(f"q{jq}", 4)
    def qs(bi):
        for jq in qsched.get(bi, ()): issue_q(jq)
    def issue_ax():
        a(f"s_lshl_b32 s{T0}, s{LB}, 1\ns_add_u32 m0, s{T0}, {L_AUX}\ns_mov_b32 s{T2}, 16384")
        a(f"buffer_load_dwordx4 v{vAx}, {S4(sAX)}, 0 offen lds")
        a(f"s_add_u32 m0, s{T0}, {L_AUX+1024}\ns_nop 0")
        a(f"buffer_load_dwordx4 v{vAx}, {S4(sAX)}, s{T2} offen lds")
        led("ax", 2)
    def setup_srd():
        a(f"s_load_dword s{TAG}, s[8:9], {WS_EPOCH}")
        srd(sWS, 8, WS_USED); srd(sWO, 12, 0x80000); srd(sOUT, 14, 0x400000)
        a(f"s_lshl_b32 s{T4}, s{G}, 18")
        a(f"s_add_u32 s{T5}, s{T4}, {WS_KW}\ns_add_u32 s{sKW}, s8, s{T5}\ns_addc_u32 s{sKW+1}, s9, 0\ns_mov_b32 s{sKW+2}, 0x40000\ns_mov_b32 s{sKW+3}, 0x20000")
        a(f"s_add_u32 s{T5}, s{T4}, {WS_VW}\ns_add_u32 s{sVW}, s8, s{T5}\ns_addc_u32 s{sVW+1}, s9, 0\ns_mov_b32 s{sVW+2}, 0x40000\ns_mov_b32 s{sVW+3}, 0x20000")
        a(f"s_mov_b32 s{VMASK}, 0xffff\ns_mov_b32 s{VMASK+1}, 0xffff")
        a("s_waitcnt lgkmcnt(0)")
        a(f"s_mul_i32 s{TAG}, s{TAG}, 0x9E3779B1\ns_add_u32 s{TAG}, s{TAG}, 0x7F4A7C15")
    def setup_masks():
        a("v_and_b32 v9, 31, v1\nv_lshrrev_b32 v10, 5, v1\nv_lshlrev_b32 v10, 2, v10\nv_sub_u32 v9, v9, v10")
        for r in range(16):
            a(f"v_cmp_le_i32 s[{MSK+2*r}:{MSK+2*r+1}], {(r&3)+8*(r>>2)}, v9")
        a("v_mov_b32 v10, 0xffff\nv_mov_b32 v11, 0xffff0000")
        for k in range(8):
            a(f"v_cndmask_b32 v{vPM+k}, 0, v10, s[{MSK+4*k}:{MSK+4*k+1}]")
            a(f"v_cndmask_b32 v9, 0, v11, s[{MSK+4*k+2}:{MSK+4*k+3}]")
            a(f"v_or_b32 v{vPM+k}, v{vPM+k}, v9")
    def setup_ones():
        a("v_mov_b32 v9, 0x3f803f80")
        for k in range(16): a(f"v_mov_b32 v{vVB+k}, v9")
    def piece_a1():
        a("v_and_b32 v12, 15, v1\nv_lshrrev_b32 v13, 4, v1\nv_cvt_f32_u32 v14, v12")
        a(f"v_mul_f32 v15, {f2u(1/256.):#x}, v14")
        a(f"v_lshlrev_b32 v9, 6, v13\ns_lshr_b32 s{T4}, s{LB}, 9\nv_add_u32 v9, s{T4}, v9\nv_cvt_f32_u32 v9, v9\nv_mul_f32 v9, v9, v15\nv_mul_f32 v11, {f2u(16.0):#x}, v15")
        for qq in range(4):
            for j in range(4):
                a("v_mov_b32 v10, v9" if j == 0 else "v_add_f32 v10, v10, v11")
                a(f"v_cos_f32 v{80+j}, v10\nv_sin_f32 v{84+j}, v10")
            a("v_add_f32 v9, v9, v15")
            a(f"v_cvt_pk_bf16_f32 v{cA1+4*qq}, v80, v81\nv_cvt_pk_bf16_f32 v{cA1+4*qq+1}, v82, v83")
            a(f"v_cvt_pk_bf16_f32 v{cA1+4*qq+2}, -v84, -v85\nv_cvt_pk_bf16_f32 v{cA1+4*qq+3}, -v86, -v87")
    def piece_f16():
        a(f"v_mul_f32 v15, {f2u(1/16.):#x}, v14\nv_lshlrev_b32 v9, 2, v13\nv_cvt_f32_u32 v9, v9\nv_mul_f32 v10, v9, v15")
        for k in range(4):
            a("v_cos_f32 v80, v10\nv_sin_f32 v81, v10\nv_add_f32 v10, v10, v15")
            a(f"v_cvt_pk_bf16_f32 v{cF+k}, v80, v81\nv_cvt_pk_bf16_f32 v{cF+4+k}, -v81, v80")
    def piece_tw():
        a(f"v_mul_f32 v15, {f2u(1/512.):#x}, v14\nv_lshlrev_b32 v9, 3, v13\nv_cvt_f32_u32 v9, v9\nv_mul_f32 v10, v9, v15")
        for i in range(8):
            a(f"v_cos_f32 v{cTW+i}, v10\nv_sin_f32 v{cTW+8+i}, v10\nv_add_f32 v10, v10, v15")
    def piece_m2(t=80):
        a(f"v_mul_f32 v15, {f2u(1/32.):#x}, v14\nv_lshlrev_b32 v9, 3, v13\nv_cvt_f32_u32 v9, v9\nv_mul_f32 v10, v9, v15")
        for k in range(4):
            for dC in range(2):
                a(f"v_cos_f32 v{t}, v10\nv_sin_f32 v{t+1}, v10\nv_add_f32 v10, v10, v15")
                a(f"v_cvt_pk_bf16_f32 v{cM2+8*dC+k}, v{t}, v{t+1}\nv_cvt_pk_bf16_f32 v{cM2+8*dC+4+k}, -v{t+1}, v{t}")
    def piece_k1():
        a(f"s_lshl_b32 s{SRC}, s{XCD}, 4\ns_and_b32 s{T4}, s{J}, 15\ns_add_u32 s{SRC}, s{SRC}, s{T4}")
        a(f"s_mov_b32 s{K1}, s{SRC}\ns_mov_b32 s{SGN}, 0")
        a(f"s_cmp_lt_u32 s{J}, 16\ns_cbranch_scc1 L_k1done")
        a(f"s_sub_u32 s{K1}, 256, s{SRC}\ns_mov_b32 s{SGN}, 0x80000000")
        a(f"s_cmp_lg_u32 s{SRC}, 0\ns_cbranch_scc1 L_k1done")
        a(f"s_mov_b32 s{K1}, 128\ns_mov_b32 s{SRC}, 128\ns_mov_b32 s{SGN}, 0")
        a.label("L_k1done")
    def piece_g3(t=80):
        a(f"v_and_b32 v9, 7, v12\nv_lshlrev_b32 v9, 8, v9\nv_add_u32 v9, s{K1}, v9\nv_cvt_f32_u32 v9, v9\nv_mul_f32 v15, {f2u(1/2048.):#x}, v9")
        a("v_lshlrev_b32 v9, 1, v13\nv_cvt_f32_u32 v9, v9\nv_mul_f32 v10, v9, v15")
        a("v_lshrrev_b32 v11, 3, v12\nv_mul_u32_u24 v11, 0x8000, v11\nv_lshl_or_b32 v11, v11, 16, v11")
        for half in range(2):
            a(f"v_cos_f32 v{t}, v10\nv_sin_f32 v{t+1}, v10\nv_add_f32 v10, v10, v15")
            a(f"v_cvt_pk_bf16_f32 v{cG3+2*half}, v{t}, v{t+1}\nv_xor_b32 v{cG3+2*half+1}, v{cG3+2*half}, v11")
    def piece_axaddr():
        srd(sAX, 10, 0x200000)
        a(f"v_bfe_u32 v9, v1, 1, 4\nv_lshlrev_b32 v9, 17, v9\nv_lshrrev_b32 v10, 5, v1\nv_lshl_add_u32 v9, v10, 13, v9\nv_and_b32 v10, 1, v1\nv_lshl_add_u32 v9, v10, 4, v9")
        a(f"s_lshl_b32 s{T4}, s{LB}, 4\ns_lshl_b32 s{T5}, s{XCD}, 10\ns_add_u32 s{T4}, s{T4}, s{T5}\ns_lshl_b32 s{T5}, s{J}, 5\ns_add_u32 s{T4}, s{T4}, s{T5}")
        a(f"v_add_u32 v{vAx}, s{T4}, v9")
    aR1, aW, aR2, aZ = 60, 84, 80, 61
    def piece_a1addr():
        a("v_bfe_u32 v9, v1, 2, 2\nv_and_b32 v10, 3, v1")
        a(f"s_lshl_b32 s{T4}, s{LB}, 1\ns_add_u32 s{T4}, s{T4}, {L_AUX}")
        a(f"v_lshl_add_u32 v11, v13, 2, v9\nv_lshlrev_b32 v11, 5, v11\nv_lshl_add_u32 v11, v10, 3, v11\nv_add_u32 v{aR1}, s{T4}, v11")
        a(f"s_lshr_b32 s{T5}, s{LB}, 11\ns_and_b32 s{T5}, s{T5}, 1")
        a(f"v_xor_b32 v14, v12, v13\nv_xor_b32 v15, s{T5}, v13\nv_lshl_or_b32 v14, v15, 4, v14\nv_lshlrev_b32 v14, 3, v14\nv_add_u32 v{aW}, s{T4}, v14")
        a(f"v_xor_b32 v{aW+1}, 32, v{aW}\nv_xor_b32 v{aW+2}, 64, v{aW}\nv_xor_b32 v{aW+3}, 96, v{aW}")
        a("v_lshrrev_b32 v11, 1, v9\nv_and_b32 v62, 1, v9")
        a("v_lshl_or_b32 v63, v11, 3, v10\nv_lshl_or_b32 v63, v62, 2, v63")
        a(f"s_lshr_b32 s{T5}, s{LB}, 9\nv_xor_b32 v63, s{T5}, v63")
        a("v_and_b32 v14, 1, v13\nv_xor_b32 v14, v14, v10\nv_lshl_or_b32 v14, v62, 2, v14\nv_lshl_or_b32 v63, v14, 4, v63\nv_lshlrev_b32 v63, 3, v63")
        a(f"v_lshl_add_u32 v14, v13, 2, v11\nv_lshlrev_b32 v14, 10, v14\nv_add_u32 v14, v14, v63\nv_add_u32 v{aR2}, {L_AUX}, v14")
        a(f"v_xor_b32 v{aR2+1}, 8, v{aR2}\nv_xor_b32 v{aR2+2}, 16, v{aR2}\nv_xor_b32 v{aR2+3}, 24, v{aR2}")
        a(f"v_lshlrev_b32 v11, 18, v12\nv_lshl_add_u32 v{aZ}, v13, 4, v11")
        a(f"s_lshl_b32 s{ZT}, s{LB}, 5\ns_lshl_b32 s{T5}, s{XCD}, 11\ns_add_u32 s{ZT}, s{ZT}, s{T5}\ns_lshl_b32 s{T5}, s{J}, 6\ns_add_u32 s{ZT}, s{ZT}, s{T5}\ns_add_u32 s{ZT}, s{ZT}, {WS_ZW}")
        a(f"s_mov_b32 s{ZM1}, 0x00ff00ff\ns_cmp_eq_u32 s{LB}, 0\ns_cselect_b32 s{ZM0}, 0x01ff01ff, s{ZM1}")
        a(f"s_mov_b32 s{ZS}, s{ZT}\ns_mov_b32 s{ZA}, s{ZM0}\ns_mov_b32 s{ZB}, s{ZM1}")
    def pieces(bi):
        for c in pp.get(bi, ''):
            if c != 'm': a("v_cvt_f32_u32 v14, v12")
            {'m': setup_masks, 't': piece_tw, 'g': (lambda: piece_g3(136)), 'M': (lambda: piece_m2(136))}[c]()
    issue_kv(0); issue_kv(1)
    if stamps: a(f"v_mov_b32 v{VST}, 0\nv_writelane_b32 v{VST}, s{T6}, 0")
    stamp(1)
    piece_a1()
    issue_kv(2)
    stamp(2)
    wait_for("c0"); barrier()
    stamp(3)
    if late_pieces:
        piece_f16(); issue_kv(3)
        wait_for("c1"); barrier(); piece_axaddr(); piece_k1(); issue_kv(4)
        wait_for("c2"); barrier(); setup_srd(); issue_kv(5)
        wait_for("c3"); barrier(); piece_a1addr(); issue_kv(6)
        wait_for("c4"); barrier(); issue_kv(7); issue_ax()
        wait_for("c5"); barrier(); qs(5); pieces(5)
        wait_for("c6"); barrier(); qs(6); pieces(6)
    else:
        piece_f16(); issue_kv(3)
        wait_for("c1"); barrier(); piece_axaddr(); piece_k1(); piece_g3(); issue_kv(4)
        wait_for("c2"); barrier(); piece_tw(); issue_kv(5)
        wait_for("c3"); barrier(); piece_m2(); issue_kv(6)
        wait_for("c4"); barrier(); setup_srd(); issue_kv(7); issue_ax()
        wait_for("c5"); barrier(); setup_masks(); qs(5)
        wait_for("c6"); barrier(); piece_a1addr(); qs(6)
    wait_for("c7"); barrier(); qs(7)
    stamp(4)
    wait_for("ax")
    for qq in range(4): a(f"ds_read_b64_tr_b16 v[{88+2*qq}:{89+2*qq}], v{aR1} offset:{qq*512}")
    setup_ones()
    for qq in range(4):
        a(f"s_waitcnt lgkmcnt({3-qq})")
        for pl in range(2):
            d = 96 + 8*qq + 4*pl
            a(f"v_mfma_f32_16x16x16_bf16 v[{d}:{d+3}], v[{88+2*qq}:{89+2*qq}], v[{cA1+4*qq+2*pl}:{cA1+4*qq+2*pl+1}], 0")
    a("s_nop 1")
    for qq in range(4):
        for pl in range(2):
            d = 96 + 8*qq + 4*pl
            a(f"v_cvt_pk_bf16_f32 v{d}, v{d}, v{d+1}\nv_cvt_pk_bf16_f32 v{d+1}, v{d+2}, v{d+3}")
            a(f"ds_write_b64 v{aW+2*(qq&1)+pl}, v[{d}:{d+1}] offset:{qq*1024+pl*512}")
    a("s_waitcnt lgkmcnt(0)")
    wait_for("q0"); barrier()
    stamp(5)
    for uu in range(4):
        for half in range(2):
            a(f"ds_read_b64_tr_b16 v[{88+4*uu+2*half}:{89+4*uu+2*half}], v{aR2+uu} offset:{half*2048}")
    qs(8)
    for uu in range(4):
        a(f"s_waitcnt lgkmcnt({6-2*uu})")
        for pl in range(2):
            d = 104 + 8*uu + 4*pl
            a(f"v_mfma_f32_16x16x32_bf16 v[{d}:{d+3}], v[{88+4*uu}:{91+4*uu}], v[{cF+4*pl}:{cF+4*pl+3}], 0")
    def zcvt(uu):
        d = 104 + 8*uu
        a(f"v_cvt_pk_bf16_f32 v{d}, v{d}, v{d+1}\nv_cvt_pk_bf16_f32 v{d+1}, v{d+2}, v{d+3}")
        a(f"v_cvt_pk_bf16_f32 v{d+2}, v{d+4}, v{d+5}\nv_cvt_pk_bf16_f32 v{d+3}, v{d+6}, v{d+7}")
    def zstore(uu):
        d = 104 + 8*uu
        zcvt(uu)
        m = ZM0 if uu == 0 else ZM1
        a(f"s_mov_b32 exec_lo, s{m}\ns_mov_b32 exec_hi, s{m}")
        a(f"buffer_store_dwordx4 v[{d}:{d+3}], v{aZ}, {S4(sWS)}, s{ZT} offen sc1")
        a("s_mov_b64 exec, -1")
        if uu < 3: a(f"s_add_u32 s{ZT}, s{ZT}, 16384")
        led(f"z{uu}", 1)
    for k in range(8): a(f"v_xor_b32 v{cF+k}, s{SGN}, v{cF+k}")
    pieces(8)
    wait_for("q1"); barrier()
    qs(9)
    vPk = 15
    if zpark:
        a(f"s_lshl_b32 s{T4}, s{LB}, 1\ns_add_u32 s{T4}, s{T4}, {L_AUX}\nv_lshlrev_b32 v62, 4, v1\nv_add_u32 v62, s{T4}, v62")
        for uu in range(4):
            zcvt(uu)
            a(f"ds_write_b128 v62, v[{104+8*uu}:{107+8*uu}] offset:{uu*1024}")
    pieces(9)
    wait_for("q2"); barrier()
    a(f"v_mov_b32 v9, {L_CNTZ}\nv_mov_b32 v10, 0\nds_write_b32 v9, v10")
    pieces(10)
    a("s_waitcnt lgkmcnt(0)")
    wait_for("q3"); barrier()
    stamp(6)
    if not zpark:
        for uu in range(4): zstore(uu)
    pieces(11)
    if prio: a("s_setprio 1")
    stamp(7)
    barrier()
    a("s_branch L_attn")

    a.label("L_comp")
    a(f"s_cmp_lg_u32 s{WV}, 0\ns_cbranch_scc1 L_nopf")
    a("s_getpc_b64 s[56:57]")
    a.label("L_pc")
    a(f"s_lshl_b32 s{T0}, s{J}, 10\ns_add_u32 s56, s56, s{T0}\ns_addc_u32 s57, s57, 0")
    a(f"s_sub_u32 s56, s56, L_pc-{KN}\ns_subb_u32 s57, s57, 0")
    a("v_lshlrev_b32 v4, 7, v1\nv_mov_b32 v5, s57\nv_add_co_u32 v4, vcc, s56, v4\ns_nop 1\nv_addc_co_u32 v5, vcc, 0, v5, vcc")
    a(f"s_cmp_ge_u32 s{T0}, L_codeend-{KN}\ns_cbranch_scc1 L_nopf")
    a("s_mov_b64 exec, 0xff\nglobal_load_dword v254, v[4:5], off\ns_mov_b64 exec, -1")
    a.label("L_nopf")
    a("s_waitcnt lgkmcnt(0)")
    if mallpf:
        a(f"s_cmp_lg_u32 s{WV}, 1\ns_cbranch_scc1 L_nomp")
        a(f"v_and_b32 v4, 15, v1\ns_lshl_b32 s{T0}, s2, 4\nv_add_u32 v4, s{T0}, v4")
        a("v_lshlrev_b32 v5, 7, v4\nv_lshrrev_b32 v6, 3, v4\nv_mul_u32_u24 v6, 3072, v6\nv_and_b32 v4, 7, v4\nv_lshl_add_u32 v6, v4, 7, v6")
        a("s_mov_b64 exec, 0xffff")
        if mallpf & 1: a("global_load_dword v254, v5, s[12:13]")
        if mallpf & 2: a("global_load_dword v254, v6, s[6:7]")
        a("s_mov_b64 exec, -1")
        if mallpf & 4:
            a(f"s_lshl_b32 s{T0}, s2, 13\nv_lshlrev_b32 v5, 7, v1\nv_add_u32 v5, s{T0}, v5\nglobal_load_dword v254, v5, s[10:11]")
        a.label("L_nomp")
    if stamps: a(f"v_mov_b32 v{VST}, 0\nv_writelane_b32 v{VST}, s{T6}, 0")
    stamp(1)
    a(f"s_and_b32 s{RT}, s{WV}, 1\ns_lshr_b32 s{HP}, s{WV}, 1")
    vXr, vWr = 4, 8
    a("v_and_b32 v9, 31, v1\nv_lshrrev_b32 v10, 5, v1")
    a("v_lshrrev_b32 v11, 1, v9\nv_xor_b32 v11, v11, v10\nv_and_b32 v11, 7, v11\nv_lshlrev_b32 v11, 4, v11")
    a(f"s_lshl_b32 s{T0}, s{RT}, 12\nv_lshl_add_u32 v{vXr}, v9, 7, v11\nv_add_u32 v{vXr}, s{T0}, v{vXr}")
    for s in range(1, 4): a(f"v_xor_b32 v{vXr+s}, {s*32}, v{vXr}")
    a("v_bfe_u32 v9, v1, 2, 2\nv_and_b32 v10, 3, v1\nv_lshrrev_b32 v11, 4, v1")
    a("v_lshrrev_b32 v12, 1, v11\nv_lshl_add_u32 v12, v12, 3, v9\nv_lshlrev_b32 v12, 7, v12")
    a(f"v_and_b32 v13, 1, v11\nv_lshlrev_b32 v13, 1, v13\nv_lshrrev_b32 v14, 1, v10\nv_add_u32 v13, v13, v14\ns_lshl_b32 s{T0}, s{HP}, 2\nv_add_u32 v13, s{T0}, v13")
    a("v_lshlrev_b32 v14, 1, v9\nv_and_b32 v14, 4, v14\nv_xor_b32 v13, v13, v14\nv_lshl_add_u32 v12, v13, 4, v12")
    a(f"v_and_b32 v13, 1, v10\nv_lshl_add_u32 v12, v13, 3, v12\nv_add_u32 v{vWr}, {L_RING}, v12")
    setup_srd(); setup_masks(); setup_ones()
    vKst, vVst, vKl, vVl = 9, 10, 11, 12
    a(f"s_lshl_b32 s{T0}, s{RT}, 12\ns_lshl_b32 s{T1}, s{HP}, 11\ns_add_u32 s{T0}, s{T0}, s{T1}")
    a(f"v_lshlrev_b32 v13, 4, v1\nv_add_u32 v13, s{T0}, v13\nv_add_u32 v{vKl}, {L_OWNK}, v13")
    a(f"s_lshl_b32 s{T1}, s{R}, 13\nv_add_u32 v{vKst}, s{T1}, v13")
    a("v_bfe_u32 v13, v1, 4, 1\nv_lshlrev_b32 v13, 10, v13\nv_lshrrev_b32 v14, 5, v1\nv_lshl_add_u32 v13, v14, 8, v13\nv_and_b32 v14, 15, v1\nv_lshl_add_u32 v13, v14, 4, v13")
    a(f"v_add_u32 v13, s{T0}, v13\nv_add_u32 v{vVl}, {L_OWNV}, v13\nv_add_u32 v{vVst}, s{T1}, v13")
    a(f"s_lshl_b32 s{ZT}, s{G}, 5\ns_add_u32 s{ZT}, s{ZT}, s{R}\ns_lshl_b32 s{ZT}, s{ZT}, 2\ns_add_u32 s{ZT}, s{ZT}, s{WV}\ns_lshl_b32 s{ZT}, s{ZT}, 6\ns_add_u32 s{ZT}, s{ZT}, {WS_FLAGK}")
    a(f"s_mov_b32 s{T4}, {f2u(0.25 * math.log2(math.e)):#x}")
    aK, aV, aQ, FB = 16, 32, 48, 64
    if qpf is not None:
        a(f"v_lshrrev_b32 v15, 2, v1\ns_lshl_b32 s{T0}, s{J}, 4\nv_add_u32 v15, s{T0}, v15\nv_mul_u32_u24 v15, 3072, v15\nv_and_b32 v14, 3, v1\nv_lshl_add_u32 v15, v14, 7, v15")
        a(f"s_and_b32 s{T0}, s{XCD}, 1\ns_lshl_b32 s{T0}, s{T0}, 9\nv_add_u32 v15, s{T0}, v15")
    if preclr:
        for k in range(4): a(f"v_mov_b32 v{aK+k}, -1")
        if preclr & 1:
            a(f"buffer_store_dwordx4 v[{aK}:{aK+3}], v{vKst}, {S4(sKW)}, 0 offen sc1\nbuffer_store_dwordx4 v[{aK}:{aK+3}], v{vKst}, {S4(sKW)}, 0 offen offset:1024 sc1")
        if preclr & 2:
            a(f"buffer_store_dwordx4 v[{aK}:{aK+3}], v{vVst}, {S4(sVW)}, 0 offen sc1\nbuffer_store_dwordx4 v[{aK}:{aK+3}], v{vVst}, {S4(sVW)}, 0 offen offset:512 sc1")
        if preclr & 4:
            a(f"s_lshl_b32 s{T1}, s{R}, 16\ns_lshl_b32 s{T2}, s{G}, 2\ns_add_u32 s{T2}, s{T2}, s{WV}\ns_lshl_b32 s{T2}, s{T2}, 9\ns_add_u32 s{T1}, s{T1}, s{T2}\ns_add_u32 s{T1}, s{T1}, {WS_OW}\ns_add_u32 s{T2}, s{T1}, 32768")
            a(f"v_bfe_u32 v13, v1, 4, 1\nv_lshlrev_b32 v13, 14, v13\nv_lshrrev_b32 v14, 5, v1\nv_lshl_add_u32 v13, v14, 8, v13\nv_and_b32 v14, 15, v1\nv_lshl_add_u32 v13, v14, 4, v13")
            a(f"buffer_store_dwordx4 v[{aK}:{aK+3}], v13, {S4(sWS)}, s{T1} offen sc1\nbuffer_store_dwordx4 v[{aK}:{aK+3}], v13, {S4(sWS)}, s{T2} offen sc1")
    stamp(2)
    for i in range(8):
        barrier()
        if i == 0: stamp(3)
        if i == qpf:
            a(f"s_cmp_lg_u32 s{WV}, 2\ns_cbranch_scc1 L_noqpf")
            a(f"global_load_dword v254, v15, s[6:7]")
            a.label("L_noqpf")
        slot = (i % 4) * 16384
        def reads(s):
            f = FB + 12*s
            a(f"ds_read_b128 v[{f}:{f+3}], v{vXr+s} offset:{i*8192}")
            for seg in range(2):
                for half in range(2):
                    b = f + 4 + 4*seg + 2*half
                    a(f"ds_read_b64_tr_b16 v[{b}:{b+1}], v{vWr} offset:{slot + seg*8192 + (16*s+4*half)*128}")
        def mf(s, w0, w1):
            f = FB + 12*s
            c0 = "0" if (i == 0 and s == 0) else f"v[{aK}:{aK+15}]"
            c1 = "0" if (i == 0 and s == 0) else f"v[{aV}:{aV+15}]"
            a(f"s_waitcnt lgkmcnt({w0})")
            a(f"v_mfma_f32_32x32x16_bf16 v[{aK}:{aK+15}], v[{f+4}:{f+7}], v[{f}:{f+3}], {c0}")
            a(f"s_waitcnt lgkmcnt({w1})")
            a(f"v_mfma_f32_32x32x16_bf16 v[{aV}:{aV+15}], v[{f}:{f+3}], v[{f+8}:{f+11}], {c1}")
        reads(0); reads(1); reads(2)
        mf(0, 12, 10); reads(3); mf(1, 12, 10); mf(2, 7, 5); mf(3, 2, 0)
    stamp(4); rstamp(34)
    a("s_nop 10")
    for k in range(8): a(f"v_cvt_pk_bf16_f32 v{aK+k}, v{aK+2*k}, v{aK+2*k+1}")
    gst = [f"buffer_store_dwordx4 v[{aK}:{aK+3}], v{vKst}, {S4(sKW)}, 0 offen sc1",
           f"buffer_store_dwordx4 v[{aK+4}:{aK+7}], v{vKst}, {S4(sKW)}, 0 offen offset:1024 sc1",
           f"buffer_store_dwordx4 v[{aV}:{aV+3}], v{vVst}, {S4(sVW)}, 0 offen sc1",
           f"buffer_store_dwordx4 v[{aV+4}:{aV+7}], v{vVst}, {S4(sVW)}, 0 offen offset:512 sc1"]
    a(gst[0]); a(gst[1])
    for k in range(8): a(f"v_cvt_pk_bf16_f32 v{aV+k}, v{aV+2*k}, v{aV+2*k+1}")
    if vst_at == -1: a(gst[2]); a(gst[3])
    lst = [f"ds_write_b128 v{vKl}, v[{aK}:{aK+3}]", f"ds_write_b128 v{vKl}, v[{aK+4}:{aK+7}] offset:1024",
           f"ds_write_b128 v{vVl}, v[{aV}:{aV+3}]", f"ds_write_b128 v{vVl}, v[{aV+4}:{aV+7}] offset:512"]
    if not ilv_ds:
        for x in lst: a(x)
    def pubkv(at):
        if at == fk_at:
            flag_store(f"s{ZT}", 2 if vst_at < fk_at else 0); stamp(6); rstamp(30)
        if at == vst_at and at >= 0: a(gst[2]); a(gst[3])
        if at == fv_at:
            a(f"s_add_u32 s{ZT}, s{ZT}, {WS_FLAGV-WS_FLAGK}")
            a(f"v_mov_b32 v19, s{TAG}\nv_mov_b32 v20, 0\ns_waitcnt vmcnt({0 if at < 3 else 1})\ns_mov_b64 exec, 1\nbuffer_store_dword v19, v20, {S4(sWS)}, s{ZT} offen sc1\ns_mov_b64 exec, -1")
            rstamp(35)
    a("s_waitcnt lgkmcnt(0)")
    stamp(5)
    pubkv(-1)
    NQS = 7
    def qreads(g):
        jq, ks = g >> 3, g & 7
        cc, s = ks >> 2, ks & 3
        f = FB + 8*(g % NQS)
        a(f"ds_read_b128 v[{f}:{f+3}], v{vXr+s} offset:{(2*jq+cc)*8192}")
        for half in range(2):
            a(f"ds_read_b64_tr_b16 v[{f+4+2*half}:{f+5+2*half}], v{vWr} offset:{jq*16384 + cc*8192 + (16*s+4*half)*128}")
    def qmf(g):
        f = FB + 8*(g % NQS)
        c0 = "0" if g == 0 else f"v[{aQ}:{aQ+15}]"
        a(f"v_mfma_f32_32x32x16_bf16 v[{aQ}:{aQ+15}], v[{f+4}:{f+7}], v[{f}:{f+3}], {c0}")
    DEF = 3
    for jq in range(4):
        barrier()
        g0 = 8*jq
        if jq == 3:
            a(f"v_lshlrev_b32 v252, 6, v1")
            a(f"s_lshl_b32 s{T5}, s{G}, 5\ns_add_u32 s{T5}, s{T5}, s{R}\ns_lshl_b32 s{T5}, s{T5}, 8\ns_add_u32 s{T5}, s{T5}, {WS_FLAGK-4*4*FS}")
            a(f"s_min_u32 s{T3}, s{R}, 4\ns_sub_u32 s{T3}, 4, s{T3}\ns_lshl_b32 s{T3}, s{T3}, 2\ns_lshl_b32 s{T3}, 0xffff, s{T3}\ns_and_b32 s{T3}, s{T3}, 0xffff")
            a(f"s_or_b32 s{T2}, s{T3}, 0x8000\ns_cmp_eq_u32 s{WV}, 0\ns_cselect_b32 exec_lo, s{T2}, 0x8000\ns_mov_b32 exec_hi, 0")
            a(f"buffer_load_dword v16, v252, {S4(sWS)}, s{T5} offen sc1\ns_mov_b64 exec, -1")
            a.label("L_np0")
        for ks in range(4):
            qreads(g0 + ks)
            if jq and ks < DEF: qmf(g0 - DEF + ks)
        last = 8 if jq == 3 else 8 - DEF
        for ks in range(8):
            a(f"s_waitcnt lgkmcnt({3*min(3, 7-ks)})")
            if ks < last: qmf(g0 + ks)
            if ks + 4 < 8: qreads(g0 + ks + 4)
        if ilv_ds and jq == 0:
            for x in lst: a(x)
        pubkv(jq)
    a(f"s_lshl_b32 s{T0}, s{RT}, 1\ns_add_u32 s{T0}, s{T0}, s{HP}\ns_lshl_b32 s{T0}, s{T0}, 13\ns_add_u32 s{T0}, s{T0}, {L_QF}")
    a(f"v_lshlrev_b32 v{vKl}, 4, v1\nv_add_u32 v{vKl}, s{T0}, v{vKl}\ns_nop 6")
    for k in range(16): a(f"v_mul_f32 v{aQ+k}, s{T4}, v{aQ+k}")
    for k in range(8): a(f"v_cvt_pk_bf16_f32 v{aQ+k}, v{aQ+2*k}, v{aQ+2*k+1}")
    a(f"ds_write_b128 v{vKl}, v[{aQ}:{aQ+3}]\nds_write_b128 v{vKl}, v[{aQ+4}:{aQ+7}] offset:1024")
    stamp(7)
    a(f"s_cmp_lg_u32 s{WV}, 0\ns_cbranch_scc1 L_p1done")
    a(f"s_cmp_eq_u32 s{T3}, 0\ns_cbranch_scc1 L_p1done")
    a(f"s_mov_b32 exec_lo, s{T3}\ns_mov_b32 exec_hi, 0")
    poll("L_p1", 252, f"s{T5}", [16, 17, 18][:pdepth], T2)
    a.label("L_p1done")
    a("s_waitcnt lgkmcnt(0)")
    stamp(8); rstamp(31)
    barrier()

    a.label("L_attn")
    vA, vKg, vV, vV7, vV8, vM, vT, vWo, vVd = 4, 5, 6, 7, 8, 9, 10, 11, 12
    vK0 = 60
    stamp(9)
    a(f"s_and_b32 s{HH}, s{WV}, 3\ns_lshr_b32 s{QB}, s{WV}, 2\ns_lshl_b32 s{T1}, s{HH}, 10")
    a(f"v_lshlrev_b32 v{vT}, 4, v1\nv_add_u32 v{vKg}, s{T1}, v{vT}")
    a(f"s_lshl_b32 s{IMIN}, s{R}, 1\ns_add_u32 s{IMIN}, s{IMIN}, s{QB}\ns_lshl_b32 s{KOFF}, s{IMIN}, 12\ns_sub_u32 s{KOFF}, s{KOFF}, 32768")
    ledger.clear()
    def kdst(i): return vS + 16*(i-1) if i > 0 else vK0
    def kload(i):
        a(f"s_add_u32 s{T0}, s{KOFF}, {i*4096}\ns_max_i32 s{T0}, s{T0}, 0")
        a(f"buffer_load_dwordx4 v[{kdst(i)}:{kdst(i)+3}], v{vKg}, {S4(sKW)}, s{T0} offen sc1")
        led(f"k{i}", 1)
    for i in range(7, 3, -1): kload(i)
    a(f"s_lshl_b32 s{T0}, s{QB}, 12\ns_add_u32 s{T0}, s{T0}, s{T1}")
    a(f"s_lshr_b32 s{T2}, s{WV}, 1\ns_lshl_b32 s{T2}, s{T2}, 13\ns_and_b32 s{T3}, s{WV}, 1\ns_lshl_b32 s{T3}, s{T3}, 10\ns_add_u32 s{T2}, s{T2}, s{T3}\ns_add_u32 s{T2}, s{T2}, {L_QF}")
    a(f"v_add_u32 v{vM}, s{T2}, v{vT}\nv_add_u32 v{vA}, s{T0}, v{vT}\nv_add_u32 v{vA}, {L_OWNK}, v{vA}")
    kK8 = vS + 4
    a(f"ds_read_b128 v[{vQ}:{vQ+3}], v{vM}\nds_read_b128 v[{kK8}:{kK8+3}], v{vA}")
    VM0 = ZM1
    a(f"s_lshl_b32 s{T2}, s{R}, 13\ns_lshl_b32 s{VM0}, s{HH}, 13\ns_add_u32 s{T2}, s{T2}, s{VM0}\ns_sub_u32 s{T2}, s{T2}, 32768\nv_add_u32 v{vVd}, s{T2}, v{vT}")
    a(f"s_mul_i32 s{T3}, s{QB}, {L_OWNV-L_VREM-7*4096}\ns_add_u32 s{T3}, s{T3}, {L_VREM+7*4096}\ns_add_u32 s{T3}, s{T3}, s{T1}")
    a(f"v_lshrrev_b32 v{vA}, 5, v1\nv_and_b32 v{vM}, 15, v1\nv_lshlrev_b32 v{vM}, 4, v{vM}\nv_lshl_add_u32 v{vM}, v{vA}, 8, v{vM}")
    a(f"v_add_u32 v{vV7}, s{T3}, v{vM}\nv_add_u32 v{vV}, s{T0}, v{vM}\nv_add_u32 v{vV8}, {L_OWNV}, v{vV}")
    assert L_VREM == 0
    S8 = vS + 128
    a("s_waitcnt lgkmcnt(0)")
    a(f"v_mfma_f32_32x32x16_bf16 v[{S8}:{S8+15}], v[{kK8}:{kK8+3}], v[{vQ}:{vQ+3}], 0")
    a(f"v_lshrrev_b32 v{vA}, 3, v1\nv_lshrrev_b32 v{vWo}, 4, v1\nv_lshlrev_b32 v{vWo}, 1, v{vWo}\nv_xor_b32 v{vWo}, v{vWo}, v1\nv_and_b32 v{vWo}, 7, v{vWo}\nv_lshlrev_b32 v{vWo}, 4, v{vWo}")
    a(f"v_lshl_add_u32 v{vWo}, v{vA}, 10, v{vWo}")
    a(f"s_lshl_b32 s{T0}, s{WV}, 16\ns_lshr_b32 s{T1}, s{J}, 2\ns_lshl_b32 s{T1}, s{T1}, 7\ns_add_u32 s{T0}, s{T0}, s{T1}\nv_add_u32 v{vWo}, s{T0}, v{vWo}")
    a(f"s_lshl_b32 s{WOM}, s{WV}, 13\ns_add_u32 s{WOM}, s{WOM}, {L_WO}")
    a(f"v_mov_b32 v13, 0\nv_mov_b32 v14, {L_CNTW}\nds_write2_b32 v14, v13, v13 offset0:0 offset1:16\nds_write_b32 v14, v13 offset:128")
    def rowmax(regs, init=None):
        regs = list(regs)
        if init is None:
            a(f"v_max3_f32 v{vM}, v{regs[0]}, v{regs[1]}, v{regs[2]}\nv_max3_f32 v{vT}, v{regs[3]}, v{regs[4]}, v{regs[5]}")
            regs = regs[6:]
        tog = 0
        while regs:
            d = (vM, vT)[tog]; tog ^= 1
            a(f"v_max3_f32 v{d}, v{d}, v{regs[0]}, v{regs[1]}"); regs = regs[2:]
    def halfmax_to_c(c):
        a(f"v_max_f32 v{vM}, v{vM}, v{vT}\ns_nop 0\nv_mov_b32 v{vT}, v{vM}\ns_nop 1\nv_permlane32_swap_b32 v{vM}, v{vT}\ns_nop 1\nv_max_f32 v{vM}, v{vM}, v{vT}")
        a(f"v_sub_f32 v{c}, 0, v{vM}")
        for k in range(1, 16): a(f"v_mov_b32 v{c+k}, v{c}")
    a(f"s_cmp_eq_u32 s{IMIN}, 0\ns_cbranch_scc1 L_first")
    a.label("L_firstback")
    rowmax(range(S8, S8+16))
    halfmax_to_c(vO)
    if force_fb:
        a(f"v_mov_b32 v{vO}, 0x43480000")
        for k in range(1, 16): a(f"v_mov_b32 v{vO+k}, v{vO}")
    a("s_waitcnt lgkmcnt(0)\ns_nop 0")
    a(f"v_mfma_f32_32x32x16_bf16 v[{S8}:{S8+15}], v[{kK8}:{kK8+3}], v[{vQ}:{vQ+3}], v[{vO}:{vO+15}]")
    for i in range(3, -1, -1): kload(i)
    VFO = ZT
    a(f"s_lshl_b32 s{VFO}, s{G}, 5\ns_add_u32 s{VFO}, s{VFO}, s{R}\ns_add_u32 s{VFO}, s{VFO}, s{HH}\ns_lshl_b32 s{VFO}, s{VFO}, 8\ns_add_u32 s{VFO}, s{VFO}, {WS_FLAGV-4*4*FS}")
    a(f"v_lshlrev_b32 v3, 6, v1\ns_mov_b64 exec, 15\nbuffer_load_dword v2, v3, {S4(sWS)}, s{VFO} offen sc1\ns_mov_b64 exec, -1")
    led("vf", 1)
    stamp(18)
    def vdma():
        a(f"s_cmp_lt_u32 s{WV}, 4\ns_cbranch_scc1 L_nov")
        a(f"s_add_u32 s{T0}, s{R}, s{HH}\ns_cmp_lt_u32 s{T0}, 4\ns_cbranch_scc1 L_vok")
        wait_for("vf")
        a(f"s_mov_b64 exec, 15")
        a(f"v_cmp_ne_u32 vcc, s{TAG}, v2\ns_nop 0\ns_cbranch_vccz L_vok")
        poll("L_pv", 3, f"s{VFO}", [2], T0, first=True)
        a.label("L_vok")
        a(f"s_mov_b64 exec, -1\ns_add_u32 m0, s{VM0}, {L_VREM}\ns_nop 0")
        for ii in range(4): a(f"buffer_load_dwordx4 v{vVd}, {S4(sVW)}, 0 offen offset:{ii*1024} sc1 lds")
        a(f"v_add_u32 v{vVd}, 4096, v{vVd}\ns_add_u32 m0, s{VM0}, {L_VREM+4096}\ns_nop 0")
        for ii in range(4): a(f"buffer_load_dwordx4 v{vVd}, {S4(sVW)}, 0 offen offset:{ii*1024} sc1 lds")
        a.label("L_nov")
        led("v", 0)
    outofline = []
    def qk(i):
        def f():
            wait_for(f"k{i}")
            a(f"s_cmp_ge_u32 s{IMIN}, {8-i}\ns_cbranch_scc0 L_miss{i}")
            a(f"v_mfma_f32_32x32x16_bf16 v[{vS+16*i}:{vS+16*i+15}], v[{kdst(i)}:{kdst(i)+3}], v[{vQ}:{vQ+3}], v[{vO}:{vO+15}]")
            a.label(f"L_back{i}")
            outofline.append(i)
        return f
    wo_issued = [0]
    def issue_wo():
        k = wo_issued[0]; wo_issued[0] += 1
        a(f"s_add_u32 m0, s{WOM}, {k*1024}\ns_mov_b32 s{T0}, {k*8192}")
        a(f"buffer_load_dwordx4 v{vWo}, {S4(sWO)}, s{T0} offen lds")
        led(f"wo{k}", 1)
    def exp_seq(b):
        out = []
        for k in range(8):
            out.append(f"v_exp_f32 v{b+2*k}, v{b+2*k}")
            out.append(f"v_exp_f32 v{b+2*k+1}, v{b+2*k+1}")
            if k >= 1: out.append(f"v_cvt_pk_bf16_f32 v{b+k-1}, v{b+2*k-2}, v{b+2*k-1}")
        out.append("s_nop 0")
        out.append(f"v_cvt_pk_bf16_f32 v{b+7}, v{b+14}, v{b+15}")
        return out
    def exp_tile(i, hooks):
        hk = {}
        for idx, f in hooks: hk.setdefault(idx, []).append(f)
        for idx, ins in enumerate(exp_seq(vS + 16*i)):
            for f in hk.get(idx, ()): f()
            a(ins)
    def vread(i, buf):
        def f():
            a(f"s_mov_b64 exec, s[{VMASK}:{VMASK+1}]")
            for st in range(2):
                d = vVB + 8*buf + 4*st
                if i < 7: a(f"ds_read_b128 v[{d}:{d+3}], v{vV} offset:{i*4096+st*512}")
                else: a(f"ds_read_b128 v[{d}:{d+3}], v{vV7 if i == 7 else vV8} offset:{st*512}")
            a("s_mov_b64 exec, -1")
        return f
    first_pv = [True]
    def pv(i, buf, st, wait):
        def f():
            a(f"s_waitcnt lgkmcnt({wait})")
            p = vS + 16*i + 4*st
            c = "0" if first_pv[0] else f"v[{vO}:{vO+15}]"
            first_pv[0] = False
            a(f"v_mfma_f32_32x32x16_bf16 v[{vO}:{vO+15}], v[{vVB+8*buf+4*st}:{vVB+8*buf+4*st+3}], v[{p}:{p+3}], {c}")
        return f
    def cnt_add(addr, rtn=None):
        a(f"v_mov_b32 v252, {addr}\nv_mov_b32 v253, 1\ns_mov_b64 exec, 1")
        a(f"ds_add_rtn_u32 v{rtn}, v252, v253" if rtn else "ds_add_u32 v252, v253")
        a("s_mov_b64 exec, -1")
    def cnt_wait(addr, n, lab):
        a(f"v_mov_b32 v252, {addr}\ns_mov_b32 s8, 0")
        a.label(lab)
        a(f"ds_read_b32 v253, v252\ns_add_u32 s8, s8, 1\ns_waitcnt lgkmcnt(0)\nv_readfirstlane_b32 s9, v253")
        a(f"s_cmp_ge_u32 s8, 0x100000\ns_cbranch_scc1 {lab}x\ns_cmp_lt_u32 s9, {n}\ns_cbranch_scc1 {lab}")
        a.label(lab + "x")
    def fa_publish():
        a(f"s_cmp_lt_u32 s{WV}, 4\ns_cbranch_scc1 L_nofs\ns_waitcnt lgkmcnt(0)\nv_readfirstlane_b32 s{T0}, v15\ns_cmp_lg_u32 s{T0}, 3\ns_cbranch_scc1 L_nofs")
        a(f"s_lshl_b32 s{T0}, s2, 6\ns_add_u32 s{T0}, s{T0}, {WS_FLAGA}")
        flag_store(f"s{T0}")
        a.label("L_nofs")
    qk(7)()
    if not zpark:
        a(f"s_cmp_lt_u32 s{WV}, 4\ns_cbranch_scc1 L_nocz")
        cnt_add(L_CNTZ, rtn=15)
        a.label("L_nocz")
    qk(6)()
    a("s_nop 7")
    stamp(10)
    exp_tile(7, ([] if zpark else [(8, fa_publish)]) + [(12, qk(5))])
    exp_tile(6, [(4, qk(4)), (16, qk(3))])
    exp_tile(5, [(2, qk(2)), (10, qk(1)), (18, qk(0)), (18, vdma)])
    exp_tile(4, [(12, issue_wo)])
    if npre_b14 == 5: exp_tile(3, [(12, issue_wo)])
    wait_for("v")
    stamp(11)
    barrier()
    stamp(19)
    if zpark:
        zr = [vS+16*7+8, vS+16*7+12, vS+16*6+8, vS+16*6+12]
        a(f"s_cmp_lt_u32 s{WV}, 4\ns_cbranch_scc1 L_nozs")
        a(f"s_lshl_b32 s{T0}, s{LB}, 1\ns_add_u32 s{T0}, s{T0}, {L_AUX}\nv_lshlrev_b32 v13, 4, v1\nv_add_u32 v13, s{T0}, v13")
        for uu in range(4): a(f"ds_read_b128 v[{zr[uu]}:{zr[uu]+3}], v13 offset:{uu*1024}")
        a("v_and_b32 v13, 15, v1\nv_lshlrev_b32 v13, 18, v13\nv_lshrrev_b32 v14, 4, v1\nv_lshl_add_u32 v13, v14, 4, v13")
        for uu in range(4):
            m = ZA if uu == 0 else ZB
            a(f"s_waitcnt lgkmcnt({3-uu})\ns_mov_b32 exec_lo, s{m}\ns_mov_b32 exec_hi, s{m}")
            a(f"buffer_store_dwordx4 v[{zr[uu]}:{zr[uu]+3}], v13, {S4(sWS)}, s{ZS} offen sc1")
            if uu < 3: a(f"s_add_u32 s{ZS}, s{ZS}, 16384")
        a("s_mov_b64 exec, -1")
        a.label("L_nozs")
    vread(7, 0)(); vread(6, 1)()
    OSO, FSO = T1, T5
    a(f"s_lshl_b32 s{OSO}, s{IMIN}, 15\ns_lshl_b32 s{T2}, s{G}, 2\ns_add_u32 s{T2}, s{T2}, s{HH}\ns_lshl_b32 s{T3}, s{T2}, 9")
    a(f"s_add_u32 s{OSO}, s{OSO}, s{T3}\ns_add_u32 s{OSO}, s{OSO}, {WS_OW}")
    a(f"s_lshl_b32 s{T0}, s{IMIN}, 5\ns_add_u32 s{T0}, s{T0}, s{T2}\ns_lshl_b32 s{T0}, s{T0}, 6\ns_add_u32 s{FSO}, s{T0}, {WS_FLAG2}")
    a(f"v_bfe_u32 v{vA}, v1, 4, 1\nv_lshlrev_b32 v{vA}, 14, v{vA}\nv_lshrrev_b32 v{vT}, 5, v1\nv_lshl_add_u32 v{vA}, v{vT}, 8, v{vA}\nv_and_b32 v{vT}, 15, v1\nv_lshl_add_u32 v{vA}, v{vT}, 4, v{vA}")
    if osent:
        for k in range(4): a(f"v_mov_b32 v{vK0+k}, -1")
        a(f"buffer_store_dwordx4 v[{vK0}:{vK0+3}], v{vA}, {S4(sWS)}, s{OSO} offen sc1")
        led("oclr", 1)
    for r in range(16):
        a(f"v_cndmask_b32 v{S8+r}, v{vS+r}, v{S8+r}, s[{MSK+2*r}:{MSK+2*r+1}]")
    def split():
        for k in range(8):
            a(f"v_bfi_b32 v{vS+k}, v{vPM+k}, 0, v{S8+k}\nv_and_b32 v{S8+k}, v{vPM+k}, v{S8+k}")
    order = [7, 6, 5, 4, 3, 8, 0, 2, 1] if npre_b14 == 5 else [7, 6, 5, 4, 8, 0, 3, 2, 1]
    pvq = [0]
    def pv_hooks(positions):
        h = []
        for (p0, p1) in positions:
            n = pvq[0]; pvq[0] += 1
            t = order[n]; buf = n & 1
            ahead = 2 if n + 1 < 9 else 0
            h += [(p0, pv(t, buf, 0, ahead + 1)), (p1, pv(t, buf, 1, ahead))]
            if n + 2 < 9: h.append((p1, vread(order[n+2], buf)))
        return h
    wo2 = [(9, issue_wo), (21, issue_wo)]
    def fa_poll():
        a(f"s_cmp_lt_u32 s{WV}, 4\ns_cbranch_scc1 L_nofp")
        a(f"v_lshrrev_b32 v3, 1, v1\nv_lshlrev_b32 v3, 9, v3\nv_and_b32 v2, 1, v1\nv_lshl_add_u32 v3, v2, 6, v3")
        a(f"s_lshr_b32 s{T2}, s{LB}, 4\ns_add_u32 s{ZT}, s{T2}, {WS_FLAGA}")
        a(f"buffer_load_dword v2, v3, {S4(sWS)}, s{ZT} offen sc1")
        a.label("L_nofp")
        led("fa", 0)
    if npre_b14 == 5:
        three = [(0, 4), (8, 12), (16, 20)]
        exp_tile(8, pv_hooks(three) + wo2); split()
        if fine: stamp(20)
        exp_tile(2, pv_hooks(three) + wo2 + ([] if zpark else [(2, fa_poll)]))
        if fine: stamp(21)
        exp_tile(1, pv_hooks([(0, 6), (12, 18)]) + wo2)
    else:
        two = [(1, 6), (13, 18)]
        exp_tile(8, pv_hooks(two) + wo2); split()
        exp_tile(3, pv_hooks(two) + wo2)
        exp_tile(2, pv_hooks(two) + wo2)
        exp_tile(1, pv_hooks(two) + [(9, issue_wo)])
    assert wo_issued[0] == 8
    a("s_nop 0")
    pv(1, 0, 0, 1)(); pv(1, 0, 1, 0)()
    a("s_nop 7\ns_nop 1")
    a(f"s_mov_b32 s{T2}, {f2u(2.0**-80):#x}\ns_mov_b32 s{T3}, {f2u(2.0**100):#x}\ns_movk_i32 s{T4}, 0x1f8")
    a(f"v_add_f32 v{vT}, v{vO}, v{vO+1}\nv_add_f32 v{vM}, v{vO+2}, v{vO+3}\nv_add_f32 v{vT}, v{vT}, v{vO+4}\nv_add_f32 v{vM}, v{vM}, v{vO+5}")
    a(f"v_add_f32 v{vT}, v{vT}, v{vO+6}\nv_add_f32 v{vM}, v{vM}, v{vO+7}\nv_add_f32 v{vT}, v{vT}, v{vM}")
    a(f"v_cmp_ge_f32 s[8:9], v{vO+8}, s{T2}\nv_cmp_le_f32 vcc, v{vO+8}, s{T3}".replace(f"v_cmp_le_f32 vcc, v{vO+8}, s{T3}", f"v_cmp_ge_f32 vcc, s{T3}, v{vO+8}"))
    a(f"s_and_b64 s[8:9], s[8:9], vcc\nv_cmp_class_f32 vcc, v{vT}, s{T4}".replace(f"v_cmp_class_f32 vcc, v{vT}, s{T4}", f"v_cmp_class_f32_e64 vcc, v{vT}, s{T4}"))
    a(f"v_rcp_f32 v{vT}, v{vO+8}")
    a(f"s_and_b64 vcc, vcc, s[8:9]\ns_cmp_eq_u64 vcc, -1\ns_cbranch_scc0 L_fb")
    a.label("L_norm")
    for k in range(8): a(f"v_mul_f32 v{vO+k}, v{vO+k}, v{vT}")
    for k in range(4): a(f"v_cvt_pk_bf16_f32 v{vO+k}, v{vO+2*k}, v{vO+2*k+1}")
    stamp(12)
    if osent: wait_for("oclr")
    if zpark:
        a(f"s_cmp_lt_u32 s{WV}, 4\ns_cbranch_scc1 L_nocz")
        cnt_add(L_CNTA + 64, rtn=15)
        a.label("L_nocz")
    a(f"buffer_store_dwordx4 v[{vO}:{vO+3}], v{vA}, {S4(sWS)}, s{T1} offen sc1")
    if osent: flag_store(f"s{T5}"); rstamp(32)
    a(f"s_cmp_lt_u32 s{WV}, 4\ns_cbranch_scc1 L_oproj")

    if prio: a("s_setprio 0")
    if zpark: fa_publish()
    vZ = 14
    a(f"v_bfe_u32 v{vZ}, v1, 3, 1\nv_lshlrev_b32 v{vZ}, 9, v{vZ}\nv_lshrrev_b32 v{vA}, 4, v1\nv_lshl_add_u32 v{vZ}, v{vA}, 7, v{vZ}")
    a(f"v_and_b32 v{vA}, 1, v{vA}\nv_xor_b32 v{vA}, v{vA}, v1\nv_and_b32 v{vA}, 7, v{vA}\nv_lshl_add_u32 v{vZ}, v{vA}, 4, v{vZ}")
    a(f"s_lshl_b32 s{T0}, s{SRC}, 14\ns_lshl_b32 s{T1}, s{LB}, 1\ns_add_u32 s{T0}, s{T0}, s{T1}\ns_add_u32 s{T0}, s{T0}, {WS_ZW}")
    a(f"s_add_u32 m0, s{T1}, {L_AUX}")
    led("o", 2 if osent else 1)
    if zpark:
        if osent: a(f"s_add_u32 s{T5}, s{T5}, {WS_FLAG2F-WS_FLAG2}")
        flag_store(f"s{T5}", 0)
        cnt_add(L_CNTW)
        stamp(13)
        fa_poll()
    wait_for("fa")
    a(f"v_cmp_ne_u32 vcc, s{TAG}, v2\ns_mov_b32 s{T4}, 0\ns_cbranch_vccz L_pa_ok")
    a.label("L_pa")
    a(f"s_sleep 8\nbuffer_load_dword v2, v3, {S4(sWS)}, s{ZT} offen sc1\ns_waitcnt vmcnt(0)")
    a(f"v_cmp_ne_u32 vcc, s{TAG}, v2\ns_add_u32 s{T4}, s{T4}, 1\ns_cbranch_vccz L_pa_ok")
    a(f"s_cmp_lt_u32 s{T4}, {POLL_MAX}\ns_cbranch_scc1 L_pa")
    a.label("L_pa_ok")
    for ii in range(4): a(f"buffer_load_dwordx4 v{vZ}, {S4(sWS)}, s{T0} offen offset:{ii*1024} sc1 lds")
    if not zpark:
        if osent: a(f"s_add_u32 s{T5}, s{T5}, {WS_FLAG2F-WS_FLAG2}")
        flag_store(f"s{T5}", 4)
        cnt_add(L_CNTW)
        stamp(13)
    if not osent: rstamp(32)
    stamp(23)
    a("v_bfe_u32 v9, v1, 2, 2\nv_and_b32 v10, 3, v1\nv_and_b32 v12, 15, v1\nv_lshrrev_b32 v13, 4, v1")
    a("v_lshrrev_b32 v4, 1, v9\nv_mul_u32_u24 v5, 17, v4\nv_lshrrev_b32 v6, 1, v13\nv_lshl_add_u32 v5, v6, 6, v5\nv_and_b32 v6, 1, v13\nv_lshl_add_u32 v5, v6, 3, v5\nv_lshl_add_u32 v5, v10, 1, v5")
    a(f"v_and_b32 v7, 1, v9\nv_lshlrev_b32 v5, 4, v5\nv_lshl_add_u32 v5, v7, 3, v5\ns_add_u32 s{T1}, s{T1}, {L_AUX}\nv_add_u32 v60, s{T1}, v5\nv_xor_b32 v61, 16, v60")
    a(f"s_lshr_b32 s{T2}, s{LB}, 11\ns_and_b32 s{T3}, s{T2}, 1")
    a(f"v_and_b32 v8, 2, v13\nv_xor_b32 v8, v8, v12\nv_xor_b32 v11, s{T3}, v13\nv_lshl_or_b32 v8, v11, 4, v8\nv_lshlrev_b32 v8, 3, v8\nv_add_u32 v8, s{T1}, v8")
    a("v_xor_b32 v11, 32, v8\nv_xor_b32 v14, 64, v8\nv_xor_b32 v15, 96, v8")
    a("v_lshrrev_b32 v4, 1, v10\nv_and_b32 v5, 1, v10\nv_mul_u32_u24 v5, 34, v5\nv_or_b32 v4, v4, v5")
    a(f"v_xor_b32 v5, s{T2}, v9\nv_lshl_or_b32 v4, v5, 2, v4\nv_and_b32 v5, 1, v13\nv_lshl_or_b32 v4, v5, 4, v4\nv_lshl_or_b32 v4, v9, 6, v4")
    a(f"v_lshlrev_b32 v4, 3, v4\nv_lshl_add_u32 v4, v13, 12, v4\nv_add_u32 v4, {L_AUX}, v4")
    a("v_xor_b32 v5, 128, v4\nv_xor_b32 v6, 16, v4\nv_xor_b32 v7, 144, v4")
    a(f"v_and_b32 v62, 7, v12\nv_lshlrev_b32 v62, 19, v62\nv_lshrrev_b32 v63, 3, v12\nv_lshl_add_u32 v62, v63, 9, v62\nv_lshl_add_u32 v62, v13, 4, v62")
    a(f"s_lshl_b32 s{T0}, s{K1}, 11\ns_lshr_b32 s{T1}, s{LB}, 4\ns_add_u32 s{T0}, s{T0}, s{T1}")
    D0, C1, Y, C2 = 64, 80, 112, 132
    a(f"s_waitcnt vmcnt({0 if zpark else 1})")
    stamp(24)
    for n2lo in range(2):
        for dB1 in range(2):
            for half in range(2):
                d = D0 + 8*n2lo + 4*dB1 + 2*half
                a(f"ds_read_b64_tr_b16 v[{d}:{d+1}], v{60+dB1} offset:{n2lo*2048+half*512}")
    for n2lo in range(2):
        for dB1 in range(2):
            a(f"s_waitcnt lgkmcnt({6-4*n2lo-2*dB1})")
            for pl in range(2):
                d = C1 + 16*n2lo + 8*dB1 + 4*pl; f = D0 + 8*n2lo + 4*dB1
                a(f"v_mfma_f32_16x16x32_bf16 v[{d}:{d+3}], v[{f}:{f+3}], v[{cF+4*pl}:{cF+4*pl+3}], 0")
    a("s_nop 1")
    wa2 = {(0,0):8, (0,1):11, (1,0):14, (1,1):15}
    for n2lo in range(2):
        for dB1 in range(2):
            for r in range(4):
                zr = C1 + 16*n2lo + 8*dB1 + r; zi = zr + 4
                c = cTW + 4*dB1 + r; s_ = c + 8
                y = Y + 8*n2lo + 4*(r & 1) + 2*dB1 + (r >> 1)
                t = 128 + 2*(r & 1)
                a(f"v_mul_f32 v{t}, v{zr}, v{c}\nv_mul_f32 v{t+1}, v{zi}, v{c}\nv_fmac_f32 v{t}, v{zi}, v{s_}\nv_fma_f32 v{t+1}, -v{zr}, v{s_}, v{t+1}")
                a(f"v_cvt_pk_bf16_f32 v{y}, v{t}, v{t+1}")
        a("s_nop 1")
        for dC in range(2):
            for pl in range(2):
                d = C2 + 16*n2lo + 8*dC + 4*pl; y = Y + 8*n2lo + 4*dC; m = cM2 + 8*dC + 4*pl
                a(f"v_mfma_f32_16x16x32_bf16 v[{d}:{d+3}], v[{y}:{y+3}], v[{m}:{m+3}], 0")
    for n2lo in range(2):
        if n2lo == 1: a("s_nop 1")
        for dC in range(2):
            for pl in range(2):
                d = C2 + 16*n2lo + 8*dC + 4*pl
                a(f"v_cvt_pk_bf16_f32 v{d}, v{d}, v{d+1}\nv_cvt_pk_bf16_f32 v{d+1}, v{d+2}, v{d+3}")
                a(f"ds_write_b64 v{wa2[(dC,pl)]}, v[{d}:{d+1}] offset:{n2lo*2048+dC*1024+pl*512}")
    a("s_waitcnt lgkmcnt(0)")
    cnt_add(L_CNTA)
    stamp(14)
    cnt_wait(L_CNTA, 4, "L_cwa")
    for k in range(4):
        for half in range(2):
            a(f"ds_read_b64_tr_b16 v[{D0+4*k+2*half}:{D0+4*k+2*half+1}], v{4+k} offset:{half*2048}")
    a(f"s_cmp_lg_u32 s2, 0\ns_cbranch_scc1 L_noep\ns_cmp_lg_u32 s{WV}, 4\ns_cbranch_scc1 L_noep")
    assert WS_EPOCH == 0
    flag_store("0")
    a.label("L_noep")
    for k in range(4):
        a(f"s_waitcnt lgkmcnt({6-2*k})")
        a(f"v_mfma_f32_16x16x32_bf16 v[{C1+4*k}:{C1+4*k+3}], v[{D0+4*k}:{D0+4*k+3}], v[{cG3}:{cG3+3}], 0")
    a("s_nop 7")
    for pp in range(2):
        b = C1 + 8*pp
        for k in range(4): a(f"v_cvt_pk_bf16_f32 v{b+k}, v{b+2*k}, v{b+2*k+1}")
        a(f"buffer_store_dwordx4 v[{b}:{b+3}], v62, {S4(sOUT)}, s{T0} offen offset:{pp*64}")
    stamp(15)
    a("s_branch L_fin")

    a.label("L_oproj")
    a(f"s_lshl_b32 s{RP}, s{XCD}, 2\ns_and_b32 s{T0}, s{J}, 3\ns_add_u32 s{RP}, s{RP}, s{T0}")
    a("v_bfe_u32 v9, v1, 2, 2\nv_and_b32 v10, 3, v1\nv_lshrrev_b32 v13, 4, v1")
    a("v_lshrrev_b32 v4, 1, v13\nv_and_b32 v5, 1, v13\nv_lshlrev_b32 v4, 4, v4\nv_lshl_add_u32 v4, v5, 2, v4\nv_add_u32 v4, v4, v9\nv_lshlrev_b32 v4, 7, v4")
    a("v_lshrrev_b32 v6, 1, v9\nv_lshl_add_u32 v6, v5, 1, v6\nv_lshlrev_b32 v6, 1, v6\nv_lshrrev_b32 v7, 1, v10\nv_xor_b32 v6, v6, v7\nv_lshl_add_u32 v4, v6, 4, v4")
    a(f"v_and_b32 v7, 1, v10\nv_lshl_add_u32 v4, v7, 3, v4\nv_add_u32 v4, {L_WO}, v4")
    a("v_xor_b32 v5, 32, v4\nv_xor_b32 v6, 64, v4\nv_xor_b32 v7, 96, v4")
    a(f"s_lshl_b32 s{T0}, s{RP}, 2\ns_add_u32 s{T0}, s{T0}, s{WV}")
    a(f"s_lshl_b32 s{T1}, s{T0}, 14\ns_add_u32 s{T1}, s{T1}, {WS_OW}\nv_lshlrev_b32 v8, 4, v1\nv_add_u32 v8, s{T1}, v8")
    a(f"s_lshr_b32 s{T1}, s{T0}, 1\ns_lshl_b32 s{T1}, s{T1}, 11\ns_add_u32 s{T4}, s{T1}, {WS_FLAG2}\nv_lshlrev_b32 v15, 6, v1")
    a(f"s_lshl_b32 s{T0}, s{T0}, 15\ns_lshr_b32 s{T1}, s{J}, 2\ns_lshl_b32 s{T1}, s{T1}, 7\ns_add_u32 s{T0}, s{T0}, s{T1}\ns_add_u32 s{RP}, s{T0}, 1024")
    a("v_and_b32 v12, 15, v1\nv_lshlrev_b32 v12, 11, v12\nv_and_b32 v14, 1, v13\nv_lshl_add_u32 v12, v14, 5, v12\nv_lshrrev_b32 v14, 1, v13\nv_lshl_add_u32 v12, v14, 4, v12")
    FIN = T5
    if osent: a(f"s_add_u32 s{T5}, s{T5}, {WS_FLAG2F-WS_FLAG2}")
    flag_store(f"s{T5}", 0)
    cnt_add(L_CNTW)
    a(f"s_mov_b32 s{FIN}, 0")
    stamp(13)
    if not osent: rstamp(32)
    OF, ACC = 64, 16
    sets = [128 + 16*k for k in range(7)] + [32, 48]
    sets = sets[:npre]
    def wbase(jj): return sets[jj % len(sets)]
    def wreads(jj):
        b = wbase(jj)
        for nt in range(4):
            for half in range(2):
                a(f"ds_read_b64_tr_b16 v[{b+4*nt+2*half}:{b+4*nt+2*half+1}], v{4+nt} offset:{(32*jj+8*half)*128}")
    cnt_wait(L_CNTW, 8, "L_cww")
    stamp(23)
    a.label("L_oredo")
    def oloads():
        a(f"s_mov_b32 s{T1}, 4096\ns_mov_b32 s{T2}, 8192\ns_mov_b32 s{T3}, 12288")
        for jj in range(16):
            so = ("0", f"s{T1}", f"s{T2}", f"s{T3}")[jj >> 2]
            a(f"buffer_load_dwordx4 v[{OF+4*jj}:{OF+4*jj+3}], v8, {S4(sWS)}, {so} offen offset:{(jj&3)*1024} sc1")
    def pre(lo, hi):
        for jj in range(lo, hi):
            if jj: a("s_waitcnt lgkmcnt(7)")
            wreads(jj)
    H = 4
    a(f"s_mov_b32 exec_hi, 0\ns_waitcnt vmcnt(0)\nbuffer_load_dword v10, v15, {S4(sWS)}, s{T4} offen sc1\ns_mov_b64 exec, -1")
    pre(0, H)
    a(f"s_mov_b32 exec_hi, 0\ns_waitcnt vmcnt(0)\nv_cmp_ne_u32 vcc, s{TAG}, v10\ns_nop 0\ns_cbranch_vccnz L_p2slow\ns_mov_b64 exec, -1")
    stamp(24); rstamp(33)
    oloads()
    pre(H, len(sets))
    a("s_branch L_ogo")
    a.label("L_p2slow")
    a(f"buffer_load_dword v10, v15, {S4(sWS)}, s{T4} offen sc1\ns_mov_b64 exec, -1")
    pre(H, len(sets))
    a("s_mov_b32 exec_hi, 0")
    poll("L_p2", 15, f"s{T4}", [10], T3)
    stamp(24); rstamp(33)
    oloads()
    a.label("L_ogo")
    stamp(14)
    n = len(sets)
    for jj in range(16):
        lg = "lgkmcnt(0)" if jj in (0, n) else ""
        a(f"s_waitcnt vmcnt({15-jj}) {lg}")
        b = wbase(jj)
        for nt in range(4):
            c = "0" if jj == 0 else f"v[{ACC+4*nt}:{ACC+4*nt+3}]"
            a(f"v_mfma_f32_16x16x32_bf16 v[{ACC+4*nt}:{ACC+4*nt+3}], v[{b+4*nt}:{b+4*nt+3}], v[{OF+4*jj}:{OF+4*jj+3}], {c}")
        if jj + n < 16:
            if jj: a("s_waitcnt lgkmcnt(7)")
            wreads(jj + n)
    a("s_nop 4")
    if osent:
        a(f"v_cmp_u_f32 vcc, v{ACC}, v{ACC}\ns_nop 1")
        if force_ofb: a("s_mov_b64 vcc, 1")
        a("s_cbranch_vccnz L_ofb")
        a.label("L_oback")
    else: a("s_nop 2")
    for k in range(8): a(f"v_cvt_pk_bf16_f32 v{ACC+k}, v{ACC+2*k}, v{ACC+2*k+1}")
    a("s_nop 1")
    for p in range(2):
        b = ACC + 4*p
        a(f"v_permlane16_swap_b32 v{b}, v{b+2}\nv_permlane16_swap_b32 v{b+1}, v{b+3}")
    for p in range(2):
        b = ACC + 4*p
        a(f"buffer_store_dwordx4 v[{b}:{b+3}], v12, {S4(sOUT)}, s{RP} offen offset:{p*64}")
    stamp(15)
    a.label("L_fin")
    if stamps:
        a("s_waitcnt vmcnt(0)")
        stamp(16)
        a(f"s_memrealtime s[{T6}:{T7}]\ns_waitcnt lgkmcnt(0)\nv_writelane_b32 v{VST}, s{T6}, 17")
        a(f"s_lshl_b32 s{T0}, s2, 3\ns_add_u32 s{T0}, s{T0}, s{WV}\ns_lshl_b32 s{T0}, s{T0}, 8\ns_add_u32 s{T0}, s{T0}, {WS_STAMP}")
        a(f"v_lshlrev_b32 v4, 2, v1\nbuffer_store_dword v{VST}, v4, {S4(sWS)}, s{T0} offen")
    a.label("L_end")
    a("s_endpgm")

    if osent:
        a.label("L_ofb")
        a(f"s_cmp_lg_u32 s{FIN}, 0\ns_cbranch_scc1 L_oback\ns_mov_b32 s{FIN}, 1\ns_add_u32 s{T4}, s{T4}, {WS_FLAG2F-WS_FLAG2}")
        a("s_branch L_oredo")
    for i in outofline:
        a.label(f"L_miss{i}")
        a(f"v_mov_b32 v{vS+16*i}, {NEG:#x}")
        for r in range(1, 16): a(f"v_mov_b32 v{vS+16*i+r}, v{vS+16*i}")
        a(f"s_branch L_back{i}")
    a.label("L_first")
    a(f"v_mov_b32 v13, {NEG:#x}")
    for r in range(16): a(f"v_cndmask_b32 v{S8+r}, v13, v{S8+r}, s[{MSK+2*r}:{MSK+2*r+1}]")
    a("s_branch L_firstback")
    TT, CC, FI = vS + 16, vS + 32, T2
    a.label("L_fb")
    a(f"v_mov_b32 v{vM}, {NEG:#x}\nv_mov_b32 v{vT}, v{vM}\nv_mov_b32 v13, v{vM}")
    def fb_tile(tag, cop):
        a(f"s_add_u32 s{T0}, s{IMIN}, s{FI}\ns_cmp_lt_u32 s{T0}, 8\ns_cbranch_scc1 L_fb{tag}_next")
        a(f"s_lshl_b32 s{T0}, s{FI}, 12\ns_add_u32 s{T0}, s{T0}, s{KOFF}")
        a(f"buffer_load_dwordx4 v[{vK0}:{vK0+3}], v{vKg}, {S4(sKW)}, s{T0} offen sc1\ns_waitcnt vmcnt(0)")
        a(f"v_mfma_f32_32x32x16_bf16 v[{TT}:{TT+15}], v[{vK0}:{vK0+3}], v[{vQ}:{vQ+3}], {cop}\ns_nop 15")
        a(f"s_cmp_lg_u32 s{FI}, 0\ns_cbranch_scc1 L_fb{tag}_n0")
        for r in range(16): a(f"v_cndmask_b32 v{TT+r}, v{TT+r}, v13, s[{MSK+2*r}:{MSK+2*r+1}]")
        a.label(f"L_fb{tag}_n0")
        a(f"s_cmp_lg_u32 s{FI}, 8\ns_cbranch_scc1 L_fb{tag}_n8")
        for r in range(16): a(f"v_cndmask_b32 v{TT+r}, v13, v{TT+r}, s[{MSK+2*r}:{MSK+2*r+1}]")
        a.label(f"L_fb{tag}_n8")
    a(f"s_mov_b32 s{FI}, 0")
    a.label("L_fba")
    fb_tile("a", "0")
    rowmax(range(TT, TT+16), init=True)
    a.label("L_fba_next")
    a(f"s_add_u32 s{FI}, s{FI}, 1\ns_cmp_lt_u32 s{FI}, 9\ns_cbranch_scc1 L_fba")
    halfmax_to_c(CC)
    for k in range(16): a(f"v_mov_b32 v{vO+k}, 0")
    a(f"s_mov_b32 s{FI}, 0")
    a.label("L_fbb")
    fb_tile("b", f"v[{CC}:{CC+15}]")
    for ins in exp_seq(TT): a(ins)
    a(f"s_lshl_b32 s{T0}, s{FI}, 12\nv_add_u32 v14, s{T0}, v{vV}")
    a(f"s_cmp_lg_u32 s{FI}, 7\ns_cbranch_scc1 L_fbb_v7\nv_mov_b32 v14, v{vV7}")
    a.label("L_fbb_v7")
    a(f"s_cmp_lg_u32 s{FI}, 8\ns_cbranch_scc1 L_fbb_v8\nv_mov_b32 v14, v{vV8}")
    a.label("L_fbb_v8")
    a(f"s_mov_b64 exec, s[{VMASK}:{VMASK+1}]\nds_read_b128 v[{vVB}:{vVB+3}], v14\nds_read_b128 v[{vVB+4}:{vVB+7}], v14 offset:512\ns_mov_b64 exec, -1\ns_waitcnt lgkmcnt(0)")
    a(f"v_mfma_f32_32x32x16_bf16 v[{vO}:{vO+15}], v[{vVB}:{vVB+3}], v[{TT}:{TT+3}], v[{vO}:{vO+15}]")
    a(f"v_mfma_f32_32x32x16_bf16 v[{vO}:{vO+15}], v[{vVB+4}:{vVB+7}], v[{TT+4}:{TT+7}], v[{vO}:{vO+15}]\ns_nop 15")
    a.label("L_fbb_next")
    a(f"s_add_u32 s{FI}, s{FI}, 1\ns_cmp_lt_u32 s{FI}, 9\ns_cbranch_scc1 L_fbb")
    a(f"v_rcp_f32 v{vT}, v{vO+8}\ns_nop 0\ns_branch L_norm")
    a.label("L_codeend")
    a(".fill 256, 4, 0xBF800000")
    hdr = open("concat_heads__spectral_fnet__sliding_block__prompt.s.ref").read().split("; Override")[0]
    return kernel_file([dict(name=KN, grid=256, block=512, lds=163840, body=a.text(), vgpr=256, sgpr=102, accum=256)], hdr)

if __name__ == "__main__":
    import json
    open("concat_heads__spectral_fnet__sliding_block__prompt.s", "w").write(gen())
    open("k_st.s", "w").write(gen(stamps=True, fine=True))
    open("k_fb.s", "w").write(gen(force_fb=True))
    open("k_ofb.s", "w").write(gen(force_ofb=True))
    variants = eval(sys.argv[1]) if len(sys.argv) > 1 else [{}]
    for i, v in enumerate(variants):
        open(f"ab{i}.s", "w").write(gen(stamps=True, light=True, **v))
    json.dump([repr(v) for v in variants], open("ab.json", "w"))
```

```python
import sys, math, struct
from asmlib import *

def f2u(x): return struct.unpack("<I", struct.pack("<f", x))[0]
KN = NAME + "_kernel"
WS_EPOCH = 0
FS = 64
WS_FLAGK = 0x10000
WS_FLAGV = 0x20000
WS_FLAG2 = 0x30000
WS_FLAGA = 0x50000
WS_STAMP = 0x60000
WS_FLAG2F = 0xE0000
WS_KW = 1 << 20
WS_VW = 3 << 20
WS_OW = 5 << 20
WS_ZW = 8 << 20
WS_USED = 11 << 20
L_X = 0; L_RING = 65536; L_OWNK = 131072; L_OWNV = 139264; L_AUX = 147456
L_VREM = L_X; L_QF = L_RING + 4096
L_WO = L_RING
L_CNTZ = L_RING + 7168; L_CNTW = L_X + 32768; L_CNTA = L_X + 32768 + 64
POLL_MAX = 20000
NEG = 0xf149f2ca

def gen(stamps=False, rotmode="xcd+3", qsched={5:[0],6:[1],7:[2],8:[3]}, fk_at=0, vst_at=0, fv_at=2, qpf=None, zpark=False, pp={11:'mtgM'}, light=False, dbg=False, preclr=0, osent=True, zlate=True, force_ofb=False, npre=9, ilv_st=False, ilv_ds=True, pdepth=1, psleep=2, mallpf=0, late_pieces=True, vsrv=True, npre_b14=5, fine=False, force_fb=False, prio=True, b14_after=4):
    a = Asm()
    sX, sW, sAX, sWO, sOUT, sWS, sKW, sVW = 16, 20, 24, 28, 32, 36, 40, 44
    XCD, J, R, G, WV, ROT, TAG = 48, 49, 50, 51, 52, 53, 54
    T0, T1, T2, T3, T4, T5 = 55, 56, 57, 58, 59, 60
    LB = 61; KOFF = 62; IMIN = 63
    MSK = 64; VMASK = 96; T6, T7 = 100, 101
    K1, SRC, SGN, HH, QB, WOM = 4, 5, 6, 7, 10, 11
    RT, HP, RP = 4, 5, 4
    ZT, ZM0, ZM1 = 98, 99, 3
    ZS, ZA, ZB = 12, 13, 14
    def srd(s, ptr, size):
        a(f"s_mov_b32 s{s}, s{ptr}\ns_mov_b32 s{s+1}, s{ptr+1}\ns_mov_b32 s{s+2}, {size:#x}\ns_mov_b32 s{s+3}, 0x20000")
    def S4(s): return f"s[{s}:{s+3}]"
    VST = 255
    def stamp(idx):
        if stamps and not light:
            a(f"s_memtime s[{T6}:{T7}]\ns_waitcnt lgkmcnt(0)\nv_writelane_b32 v{VST}, s{T6}, {idx}")
    def rstamp(idx):
        if stamps and not light:
            a(f"s_memrealtime s[{T6}:{T7}]\ns_waitcnt lgkmcnt(0)\nv_writelane_b32 v{VST}, s{T6}, {idx}")
    def barrier(): a("s_barrier")
    def flag_store(soff, wait=None):
        a(f"v_mov_b32 v252, s{TAG}\nv_mov_b32 v253, 0")
        if wait is not None: a(f"s_waitcnt vmcnt({wait})")
        a(f"s_mov_b64 exec, 1\nbuffer_store_dword v252, v253, {S4(sWS)}, {soff} offen sc1\ns_mov_b64 exec, -1")
    def poll(lab, vaddr, soff, regs, cnt, first=False):
        n = len(regs)
        a(f"s_mov_b32 s{cnt}, 0")
        if first: a(f"buffer_load_dword v{regs[0]}, v{vaddr}, {S4(sWS)}, {soff} offen sc1")
        for k in range(1, n):
            a(f"buffer_load_dword v{regs[k]}, v{vaddr}, {S4(sWS)}, {soff} offen sc1")
            if k < n - 1 and psleep: a(f"s_sleep {psleep}")
        a.label(lab)
        for k in range(n):
            a(f"s_waitcnt vmcnt({n-1})\nv_cmp_ne_u32 vcc, s{TAG}, v{regs[k]}\ns_add_u32 s{cnt}, s{cnt}, 1\ns_cbranch_vccz {lab}ok")
            a(f"buffer_load_dword v{regs[k]}, v{vaddr}, {S4(sWS)}, {soff} offen sc1")
            if n > 1 and psleep: a(f"s_sleep {psleep}")
        a(f"s_cmp_lt_u32 s{cnt}, {POLL_MAX}\ns_cbranch_scc1 {lab}")
        a.label(lab + "ok")
        a("s_mov_b64 exec, -1")
    vS = 64; vO = 208; vVB = 224; vPM = 240; vQ = 248
    cF, cTW, cM2, cG3, cA1 = 16, 24, 40, 56, 64

    a("s_cmp_ge_u32 s2, 256\ns_cbranch_scc1 L_end")
    a("s_load_dwordx4 s[4:7], s[0:1], 40")
    a("s_load_dwordx2 s[8:9], s[0:1], 80")
    a("s_load_dwordx2 s[10:11], s[0:1], 0")
    a("s_load_dwordx4 s[12:15], s[0:1], 56")
    if stamps: a(f"s_memrealtime s[{T6}:{T7}]")
    a("v_lshrrev_b32 v2, 6, v0\nv_and_b32 v1, 63, v0")
    a(f"s_and_b32 s{XCD}, s2, 7\ns_lshr_b32 s{J}, s2, 3")
    a(f"v_readfirstlane_b32 s{WV}, v2")
    a(f"s_lshr_b32 s{R}, s{XCD}, 1\ns_lshl_b32 s{R}, s{R}, 3\ns_and_b32 s{T0}, s{J}, 7\ns_add_u32 s{R}, s{R}, s{T0}")
    a(f"s_and_b32 s{G}, s{XCD}, 1\ns_lshl_b32 s{G}, s{G}, 2\ns_lshr_b32 s{T0}, s{J}, 3\ns_add_u32 s{G}, s{G}, s{T0}")
    a(f"s_cmp_lt_u32 s{WV}, 4\ns_cbranch_scc1 L_comp")

    vXa, vXb, vWa, vWb, vAx = 4, 5, 6, 7, 8
    a(f"s_sub_u32 s{T1}, s{WV}, 4")
    if rotmode == "xcd+3":
        a(f"s_add_u32 s{ROT}, s{R}, s{G}\ns_and_b32 s{ROT}, s{ROT}, 3\ns_add_u32 s{ROT}, s{ROT}, s{XCD}")
    elif rotmode == "xcd+2g1":
        a(f"s_add_u32 s{ROT}, s{R}, s{G}\ns_and_b32 s{ROT}, s{ROT}, 1\ns_lshl_b32 s{ROT}, s{ROT}, 1\ns_add_u32 s{ROT}, s{ROT}, s{XCD}")
    elif rotmode == "4grp":
        a(f"s_add_u32 s{ROT}, s{R}, s{G}\ns_and_b32 s{ROT}, s{ROT}, 3\ns_lshl_b32 s{ROT}, s{ROT}, 1")
    else:
        a(f"s_mov_b32 s{ROT}, 0")
    a(f"s_lshl_b32 s{T2}, s{T1}, 4")
    a(f"s_lshl_b32 s{T0}, s{R}, 6\ns_add_u32 s{T0}, s{T0}, s{T2}")
    a("v_lshrrev_b32 v3, 3, v1")
    a(f"v_add_u32 v9, s{T2}, v3\nv_add_u32 v10, s{T0}, v3")
    a("v_lshrrev_b32 v11, 1, v3\nv_xor_b32 v11, v11, v1\nv_and_b32 v11, 7, v11\nv_lshlrev_b32 v11, 4, v11")
    a(f"v_lshl_add_u32 v{vXa}, v10, 10, v11\nv_xor_b32 v{vXb}, 64, v{vXa}\nv_add_u32 v{vXb}, 8192, v{vXb}")
    a("v_lshlrev_b32 v11, 1, v3\nv_and_b32 v11, 4, v11\nv_xor_b32 v11, v11, v1\nv_and_b32 v11, 7, v11\nv_lshlrev_b32 v11, 4, v11")
    a(f"v_mul_u32_u24 v9, 3072, v9\ns_lshl_b32 s{T0}, s{G}, 7\nv_add3_u32 v{vWa}, v9, v11, s{T0}\nv_add_u32 v{vWb}, {8*3072}, v{vWa}")
    a(f"s_lshl_b32 s{LB}, s{T1}, 11")
    a("s_waitcnt lgkmcnt(0)")
    srd(sX, 4, 0x200000); srd(sW, 6, 0x180000)
    ledger = []
    def led(name, n): ledger.append((name, n))
    def wait_for(name):
        idx = [k for k, (nm, _) in enumerate(ledger) if nm == name][-1]
        a(f"s_waitcnt vmcnt({sum(n for _, n in ledger[idx+1:])})")
    def chunk_off(i):
        a(f"s_add_u32 s{T2}, s{ROT}, {i}\ns_and_b32 s{T2}, s{T2}, 7\ns_mul_i32 s{T3}, s{T2}, {64*3072}")
    def issue_kv(i):
        slot = L_RING + (i % 4) * 16384
        chunk_off(i)
        a(f"s_lshl_b32 s{T2}, s{T2}, 7")
        a(f"s_add_u32 m0, s{LB}, {L_X + i*8192}\ns_add_u32 s{T3}, s{T3}, 1024")
        a(f"buffer_load_dwordx4 v{vXa}, {S4(sX)}, s{T2} offen lds")
        a(f"s_add_u32 m0, s{LB}, {L_X + i*8192 + 1024}\ns_add_u32 s{T0}, s{T3}, 1024")
        a(f"buffer_load_dwordx4 v{vXb}, {S4(sX)}, s{T2} offen lds")
        for seg, sr in ((0, T3), (1, T0)):
            for ii in range(2):
                a(f"s_add_u32 m0, s{LB}, {slot + seg*8192 + ii*1024}\ns_nop 0")
                a(f"buffer_load_dwordx4 v{(vWa, vWb)[ii]}, {S4(sW)}, s{sr} offen lds")
        led(f"c{i}", 6)
    def issue_q(jq):
        for cc in range(2):
            chunk_off(2*jq + cc)
            for ii in range(2):
                a(f"s_add_u32 m0, s{LB}, {L_RING + jq*16384 + cc*8192 + ii*1024}\ns_nop 0")
                a(f"buffer_load_dwordx4 v{(vWa, vWb)[ii]}, {S4(sW)}, s{T3} offen lds")
        led(f"q{jq}", 4)
    def qs(bi):
        for jq in qsched.get(bi, ()): issue_q(jq)
    def issue_ax():
        a(f"s_lshl_b32 s{T0}, s{LB}, 1\ns_add_u32 m0, s{T0}, {L_AUX}\ns_mov_b32 s{T2}, 16384")
        a(f"buffer_load_dwordx4 v{vAx}, {S4(sAX)}, 0 offen lds")
        a(f"s_add_u32 m0, s{T0}, {L_AUX+1024}\ns_nop 0")
        a(f"buffer_load_dwordx4 v{vAx}, {S4(sAX)}, s{T2} offen lds")
        led("ax", 2)
    def setup_srd():
        a(f"s_load_dword s{TAG}, s[8:9], {WS_EPOCH}")
        srd(sWS, 8, WS_USED); srd(sWO, 12, 0x80000); srd(sOUT, 14, 0x400000)
        a(f"s_lshl_b32 s{T4}, s{G}, 18")
        a(f"s_add_u32 s{T5}, s{T4}, {WS_KW}\ns_add_u32 s{sKW}, s8, s{T5}\ns_addc_u32 s{sKW+1}, s9, 0\ns_mov_b32 s{sKW+2}, 0x40000\ns_mov_b32 s{sKW+3}, 0x20000")
        a(f"s_add_u32 s{T5}, s{T4}, {WS_VW}\ns_add_u32 s{sVW}, s8, s{T5}\ns_addc_u32 s{sVW+1}, s9, 0\ns_mov_b32 s{sVW+2}, 0x40000\ns_mov_b32 s{sVW+3}, 0x20000")
        a(f"s_mov_b32 s{VMASK}, 0xffff\ns_mov_b32 s{VMASK+1}, 0xffff")
        a("s_waitcnt lgkmcnt(0)")
        a(f"s_mul_i32 s{TAG}, s{TAG}, 0x9E3779B1\ns_add_u32 s{TAG}, s{TAG}, 0x7F4A7C15")
    def setup_masks():
        a("v_and_b32 v9, 31, v1\nv_lshrrev_b32 v10, 5, v1\nv_lshlrev_b32 v10, 2, v10\nv_sub_u32 v9, v9, v10")
        for r in range(16):
            a(f"v_cmp_le_i32 s[{MSK+2*r}:{MSK+2*r+1}], {(r&3)+8*(r>>2)}, v9")
        a("v_mov_b32 v10, 0xffff\nv_mov_b32 v11, 0xffff0000")
        for k in range(8):
            a(f"v_cndmask_b32 v{vPM+k}, 0, v10, s[{MSK+4*k}:{MSK+4*k+1}]")
            a(f"v_cndmask_b32 v9, 0, v11, s[{MSK+4*k+2}:{MSK+4*k+3}]")
            a(f"v_or_b32 v{vPM+k}, v{vPM+k}, v9")
    def setup_ones():
        a("v_mov_b32 v9, 0x3f803f80")
        for k in range(16): a(f"v_mov_b32 v{vVB+k}, v9")
    def piece_a1():
        a("v_and_b32 v12, 15, v1\nv_lshrrev_b32 v13, 4, v1\nv_cvt_f32_u32 v14, v12")
        a(f"v_mul_f32 v15, {f2u(1/256.):#x}, v14")
        a(f"v_lshlrev_b32 v9, 6, v13\ns_lshr_b32 s{T4}, s{LB}, 9\nv_add_u32 v9, s{T4}, v9\nv_cvt_f32_u32 v9, v9\nv_mul_f32 v9, v9, v15\nv_mul_f32 v11, {f2u(16.0):#x}, v15")
        for qq in range(4):
            for j in range(4):
                a("v_mov_b32 v10, v9" if j == 0 else "v_add_f32 v10, v10, v11")
                a(f"v_cos_f32 v{80+j}, v10\nv_sin_f32 v{84+j}, v10")
            a("v_add_f32 v9, v9, v15")
            a(f"v_cvt_pk_bf16_f32 v{cA1+4*qq}, v80, v81\nv_cvt_pk_bf16_f32 v{cA1+4*qq+1}, v82, v83")
            a(f"v_cvt_pk_bf16_f32 v{cA1+4*qq+2}, -v84, -v85\nv_cvt_pk_bf16_f32 v{cA1+4*qq+3}, -v86, -v87")
    def piece_f16():
        a(f"v_mul_f32 v15, {f2u(1/16.):#x}, v14\nv_lshlrev_b32 v9, 2, v13\nv_cvt_f32_u32 v9, v9\nv_mul_f32 v10, v9, v15")
        for k in range(4):
            a("v_cos_f32 v80, v10\nv_sin_f32 v81, v10\nv_add_f32 v10, v10, v15")
            a(f"v_cvt_pk_bf16_f32 v{cF+k}, v80, v81\nv_cvt_pk_bf16_f32 v{cF+4+k}, -v81, v80")
    def piece_tw():
        a(f"v_mul_f32 v15, {f2u(1/512.):#x}, v14\nv_lshlrev_b32 v9, 3, v13\nv_cvt_f32_u32 v9, v9\nv_mul_f32 v10, v9, v15")
        for i in range(8):
            a(f"v_cos_f32 v{cTW+i}, v10\nv_sin_f32 v{cTW+8+i}, v10\nv_add_f32 v10, v10, v15")
    def piece_m2(t=80):
        a(f"v_mul_f32 v15, {f2u(1/32.):#x}, v14\nv_lshlrev_b32 v9, 3, v13\nv_cvt_f32_u32 v9, v9\nv_mul_f32 v10, v9, v15")
        for k in range(4):
            for dC in range(2):
                a(f"v_cos_f32 v{t}, v10\nv_sin_f32 v{t+1}, v10\nv_add_f32 v10, v10, v15")
                a(f"v_cvt_pk_bf16_f32 v{cM2+8*dC+k}, v{t}, v{t+1}\nv_cvt_pk_bf16_f32 v{cM2+8*dC+4+k}, -v{t+1}, v{t}")
    def piece_k1():
        a(f"s_lshl_b32 s{SRC}, s{XCD}, 4\ns_and_b32 s{T4}, s{J}, 15\ns_add_u32 s{SRC}, s{SRC}, s{T4}")
        a(f"s_mov_b32 s{K1}, s{SRC}\ns_mov_b32 s{SGN}, 0")
        a(f"s_cmp_lt_u32 s{J}, 16\ns_cbranch_scc1 L_k1done")
        a(f"s_sub_u32 s{K1}, 256, s{SRC}\ns_mov_b32 s{SGN}, 0x80000000")
        a(f"s_cmp_lg_u32 s{SRC}, 0\ns_cbranch_scc1 L_k1done")
        a(f"s_mov_b32 s{K1}, 128\ns_mov_b32 s{SRC}, 128\ns_mov_b32 s{SGN}, 0")
        a.label("L_k1done")
    def piece_g3(t=80):
        a(f"v_and_b32 v9, 7, v12\nv_lshlrev_b32 v9, 8, v9\nv_add_u32 v9, s{K1}, v9\nv_cvt_f32_u32 v9, v9\nv_mul_f32 v15, {f2u(1/2048.):#x}, v9")
        a("v_lshlrev_b32 v9, 1, v13\nv_cvt_f32_u32 v9, v9\nv_mul_f32 v10, v9, v15")
        a("v_lshrrev_b32 v11, 3, v12\nv_mul_u32_u24 v11, 0x8000, v11\nv_lshl_or_b32 v11, v11, 16, v11")
        for half in range(2):
            a(f"v_cos_f32 v{t}, v10\nv_sin_f32 v{t+1}, v10\nv_add_f32 v10, v10, v15")
            a(f"v_cvt_pk_bf16_f32 v{cG3+2*half}, v{t}, v{t+1}\nv_xor_b32 v{cG3+2*half+1}, v{cG3+2*half}, v11")
    def piece_axaddr():
        srd(sAX, 10, 0x200000)
        a(f"v_bfe_u32 v9, v1, 1, 4\nv_lshlrev_b32 v9, 17, v9\nv_lshrrev_b32 v10, 5, v1\nv_lshl_add_u32 v9, v10, 13, v9\nv_and_b32 v10, 1, v1\nv_lshl_add_u32 v9, v10, 4, v9")
        a(f"s_lshl_b32 s{T4}, s{LB}, 4\ns_lshl_b32 s{T5}, s{XCD}, 10\ns_add_u32 s{T4}, s{T4}, s{T5}\ns_lshl_b32 s{T5}, s{J}, 5\ns_add_u32 s{T4}, s{T4}, s{T5}")
        a(f"v_add_u32 v{vAx}, s{T4}, v9")
    aR1, aW, aR2, aZ = 60, 84, 80, 61
    def piece_a1addr():
        a("v_bfe_u32 v9, v1, 2, 2\nv_and_b32 v10, 3, v1")
        a(f"s_lshl_b32 s{T4}, s{LB}, 1\ns_add_u32 s{T4}, s{T4}, {L_AUX}")
        a(f"v_lshl_add_u32 v11, v13, 2, v9\nv_lshlrev_b32 v11, 5, v11\nv_lshl_add_u32 v11, v10, 3, v11\nv_add_u32 v{aR1}, s{T4}, v11")
        a(f"s_lshr_b32 s{T5}, s{LB}, 11\ns_and_b32 s{T5}, s{T5}, 1")
        a(f"v_xor_b32 v14, v12, v13\nv_xor_b32 v15, s{T5}, v13\nv_lshl_or_b32 v14, v15, 4, v14\nv_lshlrev_b32 v14, 3, v14\nv_add_u32 v{aW}, s{T4}, v14")
        a(f"v_xor_b32 v{aW+1}, 32, v{aW}\nv_xor_b32 v{aW+2}, 64, v{aW}\nv_xor_b32 v{aW+3}, 96, v{aW}")
        a("v_lshrrev_b32 v11, 1, v9\nv_and_b32 v62, 1, v9")
        a("v_lshl_or_b32 v63, v11, 3, v10\nv_lshl_or_b32 v63, v62, 2, v63")
        a(f"s_lshr_b32 s{T5}, s{LB}, 9\nv_xor_b32 v63, s{T5}, v63")
        a("v_and_b32 v14, 1, v13\nv_xor_b32 v14, v14, v10\nv_lshl_or_b32 v14, v62, 2, v14\nv_lshl_or_b32 v63, v14, 4, v63\nv_lshlrev_b32 v63, 3, v63")
        a(f"v_lshl_add_u32 v14, v13, 2, v11\nv_lshlrev_b32 v14, 10, v14\nv_add_u32 v14, v14, v63\nv_add_u32 v{aR2}, {L_AUX}, v14")
        a(f"v_xor_b32 v{aR2+1}, 8, v{aR2}\nv_xor_b32 v{aR2+2}, 16, v{aR2}\nv_xor_b32 v{aR2+3}, 24, v{aR2}")
        a(f"v_lshlrev_b32 v11, 18, v12\nv_lshl_add_u32 v{aZ}, v13, 4, v11")
        a(f"s_lshl_b32 s{ZT}, s{LB}, 5\ns_lshl_b32 s{T5}, s{XCD}, 11\ns_add_u32 s{ZT}, s{ZT}, s{T5}\ns_lshl_b32 s{T5}, s{J}, 6\ns_add_u32 s{ZT}, s{ZT}, s{T5}\ns_add_u32 s{ZT}, s{ZT}, {WS_ZW}")
        a(f"s_mov_b32 s{ZM1}, 0x00ff00ff\ns_cmp_eq_u32 s{LB}, 0\ns_cselect_b32 s{ZM0}, 0x01ff01ff, s{ZM1}")
        a(f"s_mov_b32 s{ZS}, s{ZT}\ns_mov_b32 s{ZA}, s{ZM0}\ns_mov_b32 s{ZB}, s{ZM1}")
    def pieces(bi):
        for c in pp.get(bi, ''):
            if c != 'm': a("v_cvt_f32_u32 v14, v12")
            {'m': setup_masks, 't': piece_tw, 'g': (lambda: piece_g3(136)), 'M': (lambda: piece_m2(136))}[c]()
    issue_kv(0); issue_kv(1)
    if stamps: a(f"v_mov_b32 v{VST}, 0\nv_writelane_b32 v{VST}, s{T6}, 0")
    stamp(1)
    piece_a1()
    issue_kv(2)
    stamp(2)
    wait_for("c0"); barrier()
    stamp(3)
    if late_pieces:
        piece_f16(); issue_kv(3)
        wait_for("c1"); barrier(); piece_axaddr(); piece_k1(); issue_kv(4)
        wait_for("c2"); barrier(); setup_srd(); issue_kv(5)
        wait_for("c3"); barrier(); piece_a1addr(); issue_kv(6)
        wait_for("c4"); barrier(); issue_kv(7); issue_ax()
        wait_for("c5"); barrier(); qs(5); pieces(5)
        wait_for("c6"); barrier(); qs(6); pieces(6)
    else:
        piece_f16(); issue_kv(3)
        wait_for("c1"); barrier(); piece_axaddr(); piece_k1(); piece_g3(); issue_kv(4)
        wait_for("c2"); barrier(); piece_tw(); issue_kv(5)
        wait_for("c3"); barrier(); piece_m2(); issue_kv(6)
        wait_for("c4"); barrier(); setup_srd(); issue_kv(7); issue_ax()
        wait_for("c5"); barrier(); setup_masks(); qs(5)
        wait_for("c6"); barrier(); piece_a1addr(); qs(6)
    wait_for("c7"); barrier(); qs(7)
    stamp(4)
    wait_for("ax")
    for qq in range(4): a(f"ds_read_b64_tr_b16 v[{88+2*qq}:{89+2*qq}], v{aR1} offset:{qq*512}")
    setup_ones()
    for qq in range(4):
        a(f"s_waitcnt lgkmcnt({3-qq})")
        for pl in range(2):
            d = 96 + 8*qq + 4*pl
            a(f"v_mfma_f32_16x16x16_bf16 v[{d}:{d+3}], v[{88+2*qq}:{89+2*qq}], v[{cA1+4*qq+2*pl}:{cA1+4*qq+2*pl+1}], 0")
    a("s_nop 1")
    for qq in range(4):
        for pl in range(2):
            d = 96 + 8*qq + 4*pl
            a(f"v_cvt_pk_bf16_f32 v{d}, v{d}, v{d+1}\nv_cvt_pk_bf16_f32 v{d+1}, v{d+2}, v{d+3}")
            a(f"ds_write_b64 v{aW+2*(qq&1)+pl}, v[{d}:{d+1}] offset:{qq*1024+pl*512}")
    a("s_waitcnt lgkmcnt(0)")
    wait_for("q0"); barrier()
    stamp(5)
    for uu in range(4):
        for half in range(2):
            a(f"ds_read_b64_tr_b16 v[{88+4*uu+2*half}:{89+4*uu+2*half}], v{aR2+uu} offset:{half*2048}")
    qs(8)
    for uu in range(4):
        a(f"s_waitcnt lgkmcnt({6-2*uu})")
        for pl in range(2):
            d = 104 + 8*uu + 4*pl
            a(f"v_mfma_f32_16x16x32_bf16 v[{d}:{d+3}], v[{88+4*uu}:{91+4*uu}], v[{cF+4*pl}:{cF+4*pl+3}], 0")
    def zcvt(uu):
        d = 104 + 8*uu
        a(f"v_cvt_pk_bf16_f32 v{d}, v{d}, v{d+1}\nv_cvt_pk_bf16_f32 v{d+1}, v{d+2}, v{d+3}")
        a(f"v_cvt_pk_bf16_f32 v{d+2}, v{d+4}, v{d+5}\nv_cvt_pk_bf16_f32 v{d+3}, v{d+6}, v{d+7}")
    def zstore(uu):
        d = 104 + 8*uu
        zcvt(uu)
        m = ZM0 if uu == 0 else ZM1
        a(f"s_mov_b32 exec_lo, s{m}\ns_mov_b32 exec_hi, s{m}")
        a(f"buffer_store_dwordx4 v[{d}:{d+3}], v{aZ}, {S4(sWS)}, s{ZT} offen sc1")
        a("s_mov_b64 exec, -1")
        if uu < 3: a(f"s_add_u32 s{ZT}, s{ZT}, 16384")
        led(f"z{uu}", 1)
    for k in range(8): a(f"v_xor_b32 v{cF+k}, s{SGN}, v{cF+k}")
    pieces(8)
    wait_for("q1"); barrier()
    qs(9)
    vPk = 15
    if zpark:
        a(f"s_lshl_b32 s{T4}, s{LB}, 1\ns_add_u32 s{T4}, s{T4}, {L_AUX}\nv_lshlrev_b32 v62, 4, v1\nv_add_u32 v62, s{T4}, v62")
        for uu in range(4):
            zcvt(uu)
            a(f"ds_write_b128 v62, v[{104+8*uu}:{107+8*uu}] offset:{uu*1024}")
    pieces(9)
    wait_for("q2"); barrier()
    a(f"v_mov_b32 v9, {L_CNTZ}\nv_mov_b32 v10, 0\nds_write_b32 v9, v10")
    pieces(10)
    a("s_waitcnt lgkmcnt(0)")
    wait_for("q3"); barrier()
    stamp(6)
    if not zpark:
        for uu in range(4): zstore(uu)
    pieces(11)
    if prio: a("s_setprio 1")
    stamp(7)
    barrier()
    a("s_branch L_attn")

    a.label("L_comp")
    a(f"s_cmp_lg_u32 s{WV}, 0\ns_cbranch_scc1 L_nopf")
    a("s_getpc_b64 s[56:57]")
    a.label("L_pc")
    a(f"s_lshl_b32 s{T0}, s{J}, 10\ns_add_u32 s56, s56, s{T0}\ns_addc_u32 s57, s57, 0")
    a(f"s_sub_u32 s56, s56, L_pc-{KN}\ns_subb_u32 s57, s57, 0")
    a("v_lshlrev_b32 v4, 7, v1\nv_mov_b32 v5, s57\nv_add_co_u32 v4, vcc, s56, v4\ns_nop 1\nv_addc_co_u32 v5, vcc, 0, v5, vcc")
    a(f"s_cmp_ge_u32 s{T0}, L_codeend-{KN}\ns_cbranch_scc1 L_nopf")
    a("s_mov_b64 exec, 0xff\nglobal_load_dword v254, v[4:5], off\ns_mov_b64 exec, -1")
    a.label("L_nopf")
    a("s_waitcnt lgkmcnt(0)")
    if mallpf:
        a(f"s_cmp_lg_u32 s{WV}, 1\ns_cbranch_scc1 L_nomp")
        a(f"v_and_b32 v4, 15, v1\ns_lshl_b32 s{T0}, s2, 4\nv_add_u32 v4, s{T0}, v4")
        a("v_lshlrev_b32 v5, 7, v4\nv_lshrrev_b32 v6, 3, v4\nv_mul_u32_u24 v6, 3072, v6\nv_and_b32 v4, 7, v4\nv_lshl_add_u32 v6, v4, 7, v6")
        a("s_mov_b64 exec, 0xffff")
        if mallpf & 1: a("global_load_dword v254, v5, s[12:13]")
        if mallpf & 2: a("global_load_dword v254, v6, s[6:7]")
        a("s_mov_b64 exec, -1")
        if mallpf & 4:
            a(f"s_lshl_b32 s{T0}, s2, 13\nv_lshlrev_b32 v5, 7, v1\nv_add_u32 v5, s{T0}, v5\nglobal_load_dword v254, v5, s[10:11]")
        a.label("L_nomp")
    if stamps: a(f"v_mov_b32 v{VST}, 0\nv_writelane_b32 v{VST}, s{T6}, 0")
    stamp(1)
    a(f"s_and_b32 s{RT}, s{WV}, 1\ns_lshr_b32 s{HP}, s{WV}, 1")
    vXr, vWr = 4, 8
    a("v_and_b32 v9, 31, v1\nv_lshrrev_b32 v10, 5, v1")
    a("v_lshrrev_b32 v11, 1, v9\nv_xor_b32 v11, v11, v10\nv_and_b32 v11, 7, v11\nv_lshlrev_b32 v11, 4, v11")
    a(f"s_lshl_b32 s{T0}, s{RT}, 12\nv_lshl_add_u32 v{vXr}, v9, 7, v11\nv_add_u32 v{vXr}, s{T0}, v{vXr}")
    for s in range(1, 4): a(f"v_xor_b32 v{vXr+s}, {s*32}, v{vXr}")
    a("v_bfe_u32 v9, v1, 2, 2\nv_and_b32 v10, 3, v1\nv_lshrrev_b32 v11, 4, v1")
    a("v_lshrrev_b32 v12, 1, v11\nv_lshl_add_u32 v12, v12, 3, v9\nv_lshlrev_b32 v12, 7, v12")
    a(f"v_and_b32 v13, 1, v11\nv_lshlrev_b32 v13, 1, v13\nv_lshrrev_b32 v14, 1, v10\nv_add_u32 v13, v13, v14\ns_lshl_b32 s{T0}, s{HP}, 2\nv_add_u32 v13, s{T0}, v13")
    a("v_lshlrev_b32 v14, 1, v9\nv_and_b32 v14, 4, v14\nv_xor_b32 v13, v13, v14\nv_lshl_add_u32 v12, v13, 4, v12")
    a(f"v_and_b32 v13, 1, v10\nv_lshl_add_u32 v12, v13, 3, v12\nv_add_u32 v{vWr}, {L_RING}, v12")
    setup_srd(); setup_masks(); setup_ones()
    vKst, vVst, vKl, vVl = 9, 10, 11, 12
    a(f"s_lshl_b32 s{T0}, s{RT}, 12\ns_lshl_b32 s{T1}, s{HP}, 11\ns_add_u32 s{T0}, s{T0}, s{T1}")
    a(f"v_lshlrev_b32 v13, 4, v1\nv_add_u32 v13, s{T0}, v13\nv_add_u32 v{vKl}, {L_OWNK}, v13")
    a(f"s_lshl_b32 s{T1}, s{R}, 13\nv_add_u32 v{vKst}, s{T1}, v13")
    a("v_bfe_u32 v13, v1, 4, 1\nv_lshlrev_b32 v13, 10, v13\nv_lshrrev_b32 v14, 5, v1\nv_lshl_add_u32 v13, v14, 8, v13\nv_and_b32 v14, 15, v1\nv_lshl_add_u32 v13, v14, 4, v13")
    a(f"v_add_u32 v13, s{T0}, v13\nv_add_u32 v{vVl}, {L_OWNV}, v13\nv_add_u32 v{vVst}, s{T1}, v13")
    a(f"s_lshl_b32 s{ZT}, s{G}, 5\ns_add_u32 s{ZT}, s{ZT}, s{R}\ns_lshl_b32 s{ZT}, s{ZT}, 2\ns_add_u32 s{ZT}, s{ZT}, s{WV}\ns_lshl_b32 s{ZT}, s{ZT}, 6\ns_add_u32 s{ZT}, s{ZT}, {WS_FLAGK}")
    a(f"s_mov_b32 s{T4}, {f2u(0.25 * math.log2(math.e)):#x}")
    aK, aV, aQ, FB = 16, 32, 48, 64
    if qpf is not None:
        a(f"v_lshrrev_b32 v15, 2, v1\ns_lshl_b32 s{T0}, s{J}, 4\nv_add_u32 v15, s{T0}, v15\nv_mul_u32_u24 v15, 3072, v15\nv_and_b32 v14, 3, v1\nv_lshl_add_u32 v15, v14, 7, v15")
        a(f"s_and_b32 s{T0}, s{XCD}, 1\ns_lshl_b32 s{T0}, s{T0}, 9\nv_add_u32 v15, s{T0}, v15")
    if preclr:
        for k in range(4): a(f"v_mov_b32 v{aK+k}, -1")
        if preclr & 1:
            a(f"buffer_store_dwordx4 v[{aK}:{aK+3}], v{vKst}, {S4(sKW)}, 0 offen sc1\nbuffer_store_dwordx4 v[{aK}:{aK+3}], v{vKst}, {S4(sKW)}, 0 offen offset:1024 sc1")
        if preclr & 2:
            a(f"buffer_store_dwordx4 v[{aK}:{aK+3}], v{vVst}, {S4(sVW)}, 0 offen sc1\nbuffer_store_dwordx4 v[{aK}:{aK+3}], v{vVst}, {S4(sVW)}, 0 offen offset:512 sc1")
        if preclr & 4:
            a(f"s_lshl_b32 s{T1}, s{R}, 16\ns_lshl_b32 s{T2}, s{G}, 2\ns_add_u32 s{T2}, s{T2}, s{WV}\ns_lshl_b32 s{T2}, s{T2}, 9\ns_add_u32 s{T1}, s{T1}, s{T2}\ns_add_u32 s{T1}, s{T1}, {WS_OW}\ns_add_u32 s{T2}, s{T1}, 32768")
            a(f"v_bfe_u32 v13, v1, 4, 1\nv_lshlrev_b32 v13, 14, v13\nv_lshrrev_b32 v14, 5, v1\nv_lshl_add_u32 v13, v14, 8, v13\nv_and_b32 v14, 15, v1\nv_lshl_add_u32 v13, v14, 4, v13")
            a(f"buffer_store_dwordx4 v[{aK}:{aK+3}], v13, {S4(sWS)}, s{T1} offen sc1\nbuffer_store_dwordx4 v[{aK}:{aK+3}], v13, {S4(sWS)}, s{T2} offen sc1")
    stamp(2)
    for i in range(8):
        barrier()
        if i == 0: stamp(3)
        if i == qpf:
            a(f"s_cmp_lg_u32 s{WV}, 2\ns_cbranch_scc1 L_noqpf")
            a(f"global_load_dword v254, v15, s[6:7]")
            a.label("L_noqpf")
        slot = (i % 4) * 16384
        def reads(s):
            f = FB + 12*s
            a(f"ds_read_b128 v[{f}:{f+3}], v{vXr+s} offset:{i*8192}")
            for seg in range(2):
                for half in range(2):
                    b = f + 4 + 4*seg + 2*half
                    a(f"ds_read_b64_tr_b16 v[{b}:{b+1}], v{vWr} offset:{slot + seg*8192 + (16*s+4*half)*128}")
        def mf(s, w0, w1):
            f = FB + 12*s
            c0 = "0" if (i == 0 and s == 0) else f"v[{aK}:{aK+15}]"
            c1 = "0" if (i == 0 and s == 0) else f"v[{aV}:{aV+15}]"
            a(f"s_waitcnt lgkmcnt({w0})")
            a(f"v_mfma_f32_32x32x16_bf16 v[{aK}:{aK+15}], v[{f+4}:{f+7}], v[{f}:{f+3}], {c0}")
            a(f"s_waitcnt lgkmcnt({w1})")
            a(f"v_mfma_f32_32x32x16_bf16 v[{aV}:{aV+15}], v[{f}:{f+3}], v[{f+8}:{f+11}], {c1}")
        reads(0); reads(1); reads(2)
        mf(0, 12, 10); reads(3); mf(1, 12, 10); mf(2, 7, 5); mf(3, 2, 0)
    stamp(4); rstamp(34)
    a("s_nop 10")
    for k in range(8): a(f"v_cvt_pk_bf16_f32 v{aK+k}, v{aK+2*k}, v{aK+2*k+1}")
    gst = [f"buffer_store_dwordx4 v[{aK}:{aK+3}], v{vKst}, {S4(sKW)}, 0 offen sc1",
           f"buffer_store_dwordx4 v[{aK+4}:{aK+7}], v{vKst}, {S4(sKW)}, 0 offen offset:1024 sc1",
           f"buffer_store_dwordx4 v[{aV}:{aV+3}], v{vVst}, {S4(sVW)}, 0 offen sc1",
           f"buffer_store_dwordx4 v[{aV+4}:{aV+7}], v{vVst}, {S4(sVW)}, 0 offen offset:512 sc1"]
    a(gst[0]); a(gst[1])
    for k in range(8): a(f"v_cvt_pk_bf16_f32 v{aV+k}, v{aV+2*k}, v{aV+2*k+1}")
    if vst_at == -1: a(gst[2]); a(gst[3])
    lst = [f"ds_write_b128 v{vKl}, v[{aK}:{aK+3}]", f"ds_write_b128 v{vKl}, v[{aK+4}:{aK+7}] offset:1024",
           f"ds_write_b128 v{vVl}, v[{aV}:{aV+3}]", f"ds_write_b128 v{vVl}, v[{aV+4}:{aV+7}] offset:512"]
    if not ilv_ds:
        for x in lst: a(x)
    def pubkv(at):
        if at == fk_at:
            flag_store(f"s{ZT}", 2 if vst_at < fk_at else 0); stamp(6); rstamp(30)
        if at == vst_at and at >= 0: a(gst[2]); a(gst[3])
        if at == fv_at:
            a(f"s_add_u32 s{ZT}, s{ZT}, {WS_FLAGV-WS_FLAGK}")
            a(f"v_mov_b32 v19, s{TAG}\nv_mov_b32 v20, 0\ns_waitcnt vmcnt({0 if at < 3 else 1})\ns_mov_b64 exec, 1\nbuffer_store_dword v19, v20, {S4(sWS)}, s{ZT} offen sc1\ns_mov_b64 exec, -1")
            rstamp(35)
    a("s_waitcnt lgkmcnt(0)")
    stamp(5)
    pubkv(-1)
    NQS = 7
    def qreads(g):
        jq, ks = g >> 3, g & 7
        cc, s = ks >> 2, ks & 3
        f = FB + 8*(g % NQS)
        a(f"ds_read_b128 v[{f}:{f+3}], v{vXr+s} offset:{(2*jq+cc)*8192}")
        for half in range(2):
            a(f"ds_read_b64_tr_b16 v[{f+4+2*half}:{f+5+2*half}], v{vWr} offset:{jq*16384 + cc*8192 + (16*s+4*half)*128}")
    def qmf(g):
        f = FB + 8*(g % NQS)
        c0 = "0" if g == 0 else f"v[{aQ}:{aQ+15}]"
        a(f"v_mfma_f32_32x32x16_bf16 v[{aQ}:{aQ+15}], v[{f+4}:{f+7}], v[{f}:{f+3}], {c0}")
    DEF = 3
    for jq in range(4):
        barrier()
        g0 = 8*jq
        if jq == 3:
            a(f"v_lshlrev_b32 v252, 6, v1")
            a(f"s_lshl_b32 s{T5}, s{G}, 5\ns_add_u32 s{T5}, s{T5}, s{R}\ns_lshl_b32 s{T5}, s{T5}, 8\ns_add_u32 s{T5}, s{T5}, {WS_FLAGK-4*4*FS}")
            a(f"s_min_u32 s{T3}, s{R}, 4\ns_sub_u32 s{T3}, 4, s{T3}\ns_lshl_b32 s{T3}, s{T3}, 2\ns_lshl_b32 s{T3}, 0xffff, s{T3}\ns_and_b32 s{T3}, s{T3}, 0xffff")
            a(f"s_or_b32 s{T2}, s{T3}, 0x8000\ns_cmp_eq_u32 s{WV}, 0\ns_cselect_b32 exec_lo, s{T2}, 0x8000\ns_mov_b32 exec_hi, 0")
            a(f"buffer_load_dword v16, v252, {S4(sWS)}, s{T5} offen sc1\ns_mov_b64 exec, -1")
            a.label("L_np0")
        for ks in range(4):
            qreads(g0 + ks)
            if jq and ks < DEF: qmf(g0 - DEF + ks)
        last = 8 if jq == 3 else 8 - DEF
        for ks in range(8):
            a(f"s_waitcnt lgkmcnt({3*min(3, 7-ks)})")
            if ks < last: qmf(g0 + ks)
            if ks + 4 < 8: qreads(g0 + ks + 4)
        if ilv_ds and jq == 0:
            for x in lst: a(x)
        pubkv(jq)
    a(f"s_lshl_b32 s{T0}, s{RT}, 1\ns_add_u32 s{T0}, s{T0}, s{HP}\ns_lshl_b32 s{T0}, s{T0}, 13\ns_add_u32 s{T0}, s{T0}, {L_QF}")
    a(f"v_lshlrev_b32 v{vKl}, 4, v1\nv_add_u32 v{vKl}, s{T0}, v{vKl}\ns_nop 6")
    for k in range(16): a(f"v_mul_f32 v{aQ+k}, s{T4}, v{aQ+k}")
    for k in range(8): a(f"v_cvt_pk_bf16_f32 v{aQ+k}, v{aQ+2*k}, v{aQ+2*k+1}")
    a(f"ds_write_b128 v{vKl}, v[{aQ}:{aQ+3}]\nds_write_b128 v{vKl}, v[{aQ+4}:{aQ+7}] offset:1024")
    stamp(7)
    a(f"s_cmp_lg_u32 s{WV}, 0\ns_cbranch_scc1 L_p1done")
    a(f"s_cmp_eq_u32 s{T3}, 0\ns_cbranch_scc1 L_p1done")
    a(f"s_mov_b32 exec_lo, s{T3}\ns_mov_b32 exec_hi, 0")
    poll("L_p1", 252, f"s{T5}", [16, 17, 18][:pdepth], T2)
    a.label("L_p1done")
    a("s_waitcnt lgkmcnt(0)")
    stamp(8); rstamp(31)
    barrier()

    a.label("L_attn")
    vA, vKg, vV, vV7, vV8, vM, vT, vWo, vVd = 4, 5, 6, 7, 8, 9, 10, 11, 12
    vK0 = 60
    stamp(9)
    a(f"s_and_b32 s{HH}, s{WV}, 3\ns_lshr_b32 s{QB}, s{WV}, 2\ns_lshl_b32 s{T1}, s{HH}, 10")
    a(f"v_lshlrev_b32 v{vT}, 4, v1\nv_add_u32 v{vKg}, s{T1}, v{vT}")
    a(f"s_lshl_b32 s{IMIN}, s{R}, 1\ns_add_u32 s{IMIN}, s{IMIN}, s{QB}\ns_lshl_b32 s{KOFF}, s{IMIN}, 12\ns_sub_u32 s{KOFF}, s{KOFF}, 32768")
    ledger.clear()
    def kdst(i): return vS + 16*(i-1) if i > 0 else vK0
    def kload(i):
        a(f"s_add_u32 s{T0}, s{KOFF}, {i*4096}\ns_max_i32 s{T0}, s{T0}, 0")
        a(f"buffer_load_dwordx4 v[{kdst(i)}:{kdst(i)+3}], v{vKg}, {S4(sKW)}, s{T0} offen sc1")
        led(f"k{i}", 1)
    for i in range(7, 3, -1): kload(i)
    a(f"s_lshl_b32 s{T0}, s{QB}, 12\ns_add_u32 s{T0}, s{T0}, s{T1}")
    a(f"s_lshr_b32 s{T2}, s{WV}, 1\ns_lshl_b32 s{T2}, s{T2}, 13\ns_and_b32 s{T3}, s{WV}, 1\ns_lshl_b32 s{T3}, s{T3}, 10\ns_add_u32 s{T2}, s{T2}, s{T3}\ns_add_u32 s{T2}, s{T2}, {L_QF}")
    a(f"v_add_u32 v{vM}, s{T2}, v{vT}\nv_add_u32 v{vA}, s{T0}, v{vT}\nv_add_u32 v{vA}, {L_OWNK}, v{vA}")
    kK8 = vS + 4
    a(f"ds_read_b128 v[{vQ}:{vQ+3}], v{vM}\nds_read_b128 v[{kK8}:{kK8+3}], v{vA}")
    VM0 = ZM1
    a(f"s_lshl_b32 s{T2}, s{R}, 13\ns_lshl_b32 s{VM0}, s{HH}, 13\ns_add_u32 s{T2}, s{T2}, s{VM0}\ns_sub_u32 s{T2}, s{T2}, 32768\nv_add_u32 v{vVd}, s{T2}, v{vT}")
    a(f"s_mul_i32 s{T3}, s{QB}, {L_OWNV-L_VREM-7*4096}\ns_add_u32 s{T3}, s{T3}, {L_VREM+7*4096}\ns_add_u32 s{T3}, s{T3}, s{T1}")
    a(f"v_lshrrev_b32 v{vA}, 5, v1\nv_and_b32 v{vM}, 15, v1\nv_lshlrev_b32 v{vM}, 4, v{vM}\nv_lshl_add_u32 v{vM}, v{vA}, 8, v{vM}")
    a(f"v_add_u32 v{vV7}, s{T3}, v{vM}\nv_add_u32 v{vV}, s{T0}, v{vM}\nv_add_u32 v{vV8}, {L_OWNV}, v{vV}")
    assert L_VREM == 0
    S8 = vS + 128
    a("s_waitcnt lgkmcnt(0)")
    a(f"v_mfma_f32_32x32x16_bf16 v[{S8}:{S8+15}], v[{kK8}:{kK8+3}], v[{vQ}:{vQ+3}], 0")
    a(f"v_lshrrev_b32 v{vA}, 3, v1\nv_lshrrev_b32 v{vWo}, 4, v1\nv_lshlrev_b32 v{vWo}, 1, v{vWo}\nv_xor_b32 v{vWo}, v{vWo}, v1\nv_and_b32 v{vWo}, 7, v{vWo}\nv_lshlrev_b32 v{vWo}, 4, v{vWo}")
    a(f"v_lshl_add_u32 v{vWo}, v{vA}, 10, v{vWo}")
    a(f"s_lshl_b32 s{T0}, s{WV}, 16\ns_lshr_b32 s{T1}, s{J}, 2\ns_lshl_b32 s{T1}, s{T1}, 7\ns_add_u32 s{T0}, s{T0}, s{T1}\nv_add_u32 v{vWo}, s{T0}, v{vWo}")
    a(f"s_lshl_b32 s{WOM}, s{WV}, 13\ns_add_u32 s{WOM}, s{WOM}, {L_WO}")
    a(f"v_mov_b32 v13, 0\nv_mov_b32 v14, {L_CNTW}\nds_write2_b32 v14, v13, v13 offset0:0 offset1:16\nds_write_b32 v14, v13 offset:128")
    def rowmax(regs, init=None):
        regs = list(regs)
        if init is None:
            a(f"v_max3_f32 v{vM}, v{regs[0]}, v{regs[1]}, v{regs[2]}\nv_max3_f32 v{vT}, v{regs[3]}, v{regs[4]}, v{regs[5]}")
            regs = regs[6:]
        tog = 0
        while regs:
            d = (vM, vT)[tog]; tog ^= 1
            a(f"v_max3_f32 v{d}, v{d}, v{regs[0]}, v{regs[1]}"); regs = regs[2:]
    def halfmax_to_c(c):
        a(f"v_max_f32 v{vM}, v{vM}, v{vT}\ns_nop 0\nv_mov_b32 v{vT}, v{vM}\ns_nop 1\nv_permlane32_swap_b32 v{vM}, v{vT}\ns_nop 1\nv_max_f32 v{vM}, v{vM}, v{vT}")
        a(f"v_sub_f32 v{c}, 0, v{vM}")
        for k in range(1, 16): a(f"v_mov_b32 v{c+k}, v{c}")
    a(f"s_cmp_eq_u32 s{IMIN}, 0\ns_cbranch_scc1 L_first")
    a.label("L_firstback")
    rowmax(range(S8, S8+16))
    halfmax_to_c(vO)
    if force_fb:
        a(f"v_mov_b32 v{vO}, 0x43480000")
        for k in range(1, 16): a(f"v_mov_b32 v{vO+k}, v{vO}")
    a("s_waitcnt lgkmcnt(0)\ns_nop 0")
    a(f"v_mfma_f32_32x32x16_bf16 v[{S8}:{S8+15}], v[{kK8}:{kK8+3}], v[{vQ}:{vQ+3}], v[{vO}:{vO+15}]")
    for i in range(3, -1, -1): kload(i)
    VFO = ZT
    a(f"s_lshl_b32 s{VFO}, s{G}, 5\ns_add_u32 s{VFO}, s{VFO}, s{R}\ns_add_u32 s{VFO}, s{VFO}, s{HH}\ns_lshl_b32 s{VFO}, s{VFO}, 8\ns_add_u32 s{VFO}, s{VFO}, {WS_FLAGV-4*4*FS}")
    a(f"v_lshlrev_b32 v3, 6, v1\ns_mov_b64 exec, 15\nbuffer_load_dword v2, v3, {S4(sWS)}, s{VFO} offen sc1\ns_mov_b64 exec, -1")
    led("vf", 1)
    stamp(18)
    def vdma():
        a(f"s_cmp_lt_u32 s{WV}, 4\ns_cbranch_scc1 L_nov")
        a(f"s_add_u32 s{T0}, s{R}, s{HH}\ns_cmp_lt_u32 s{T0}, 4\ns_cbranch_scc1 L_vok")
        wait_for("vf")
        a(f"s_mov_b64 exec, 15")
        a(f"v_cmp_ne_u32 vcc, s{TAG}, v2\ns_nop 0\ns_cbranch_vccz L_vok")
        poll("L_pv", 3, f"s{VFO}", [2], T0, first=True)
        a.label("L_vok")
        a(f"s_mov_b64 exec, -1\ns_add_u32 m0, s{VM0}, {L_VREM}\ns_nop 0")
        for ii in range(4): a(f"buffer_load_dwordx4 v{vVd}, {S4(sVW)}, 0 offen offset:{ii*1024} sc1 lds")
        a(f"v_add_u32 v{vVd}, 4096, v{vVd}\ns_add_u32 m0, s{VM0}, {L_VREM+4096}\ns_nop 0")
        for ii in range(4): a(f"buffer_load_dwordx4 v{vVd}, {S4(sVW)}, 0 offen offset:{ii*1024} sc1 lds")
        a.label("L_nov")
        led("v", 0)
    outofline = []
    def qk(i):
        def f():
            wait_for(f"k{i}")
            a(f"s_cmp_ge_u32 s{IMIN}, {8-i}\ns_cbranch_scc0 L_miss{i}")
            a(f"v_mfma_f32_32x32x16_bf16 v[{vS+16*i}:{vS+16*i+15}], v[{kdst(i)}:{kdst(i)+3}], v[{vQ}:{vQ+3}], v[{vO}:{vO+15}]")
            a.label(f"L_back{i}")
            outofline.append(i)
        return f
    wo_issued = [0]
    def issue_wo():
        k = wo_issued[0]; wo_issued[0] += 1
        a(f"s_add_u32 m0, s{WOM}, {k*1024}\ns_mov_b32 s{T0}, {k*8192}")
        a(f"buffer_load_dwordx4 v{vWo}, {S4(sWO)}, s{T0} offen lds")
        led(f"wo{k}", 1)
    def exp_seq(b):
        out = []
        for k in range(8):
            out.append(f"v_exp_f32 v{b+2*k}, v{b+2*k}")
            out.append(f"v_exp_f32 v{b+2*k+1}, v{b+2*k+1}")
            if k >= 1: out.append(f"v_cvt_pk_bf16_f32 v{b+k-1}, v{b+2*k-2}, v{b+2*k-1}")
        out.append("s_nop 0")
        out.append(f"v_cvt_pk_bf16_f32 v{b+7}, v{b+14}, v{b+15}")
        return out
    def exp_tile(i, hooks):
        hk = {}
        for idx, f in hooks: hk.setdefault(idx, []).append(f)
        for idx, ins in enumerate(exp_seq(vS + 16*i)):
            for f in hk.get(idx, ()): f()
            a(ins)
    def vread(i, buf):
        def f():
            a(f"s_mov_b64 exec, s[{VMASK}:{VMASK+1}]")
            for st in range(2):
                d = vVB + 8*buf + 4*st
                if i < 7: a(f"ds_read_b128 v[{d}:{d+3}], v{vV} offset:{i*4096+st*512}")
                else: a(f"ds_read_b128 v[{d}:{d+3}], v{vV7 if i == 7 else vV8} offset:{st*512}")
            a("s_mov_b64 exec, -1")
        return f
    first_pv = [True]
    def pv(i, buf, st, wait):
        def f():
            a(f"s_waitcnt lgkmcnt({wait})")
            p = vS + 16*i + 4*st
            c = "0" if first_pv[0] else f"v[{vO}:{vO+15}]"
            first_pv[0] = False
            a(f"v_mfma_f32_32x32x16_bf16 v[{vO}:{vO+15}], v[{vVB+8*buf+4*st}:{vVB+8*buf+4*st+3}], v[{p}:{p+3}], {c}")
        return f
    def cnt_add(addr, rtn=None):
        a(f"v_mov_b32 v252, {addr}\nv_mov_b32 v253, 1\ns_mov_b64 exec, 1")
        a(f"ds_add_rtn_u32 v{rtn}, v252, v253" if rtn else "ds_add_u32 v252, v253")
        a("s_mov_b64 exec, -1")
    def cnt_wait(addr, n, lab):
        a(f"v_mov_b32 v252, {addr}\ns_mov_b32 s8, 0")
        a.label(lab)
        a(f"ds_read_b32 v253, v252\ns_add_u32 s8, s8, 1\ns_waitcnt lgkmcnt(0)\nv_readfirstlane_b32 s9, v253")
        a(f"s_cmp_ge_u32 s8, 0x100000\ns_cbranch_scc1 {lab}x\ns_cmp_lt_u32 s9, {n}\ns_cbranch_scc1 {lab}")
        a.label(lab + "x")
    def fa_publish():
        a(f"s_cmp_lt_u32 s{WV}, 4\ns_cbranch_scc1 L_nofs\ns_waitcnt lgkmcnt(0)\nv_readfirstlane_b32 s{T0}, v15\ns_cmp_lg_u32 s{T0}, 3\ns_cbranch_scc1 L_nofs")
        a(f"s_lshl_b32 s{T0}, s2, 6\ns_add_u32 s{T0}, s{T0}, {WS_FLAGA}")
        flag_store(f"s{T0}")
        a.label("L_nofs")
    qk(7)()
    if not zpark:
        a(f"s_cmp_lt_u32 s{WV}, 4\ns_cbranch_scc1 L_nocz")
        cnt_add(L_CNTZ, rtn=15)
        a.label("L_nocz")
    qk(6)()
    a("s_nop 7")
    stamp(10)
    exp_tile(7, ([] if zpark else [(8, fa_publish)]) + [(12, qk(5))])
    exp_tile(6, [(4, qk(4)), (16, qk(3))])
    exp_tile(5, [(2, qk(2)), (10, qk(1)), (18, qk(0)), (18, vdma)])
    exp_tile(4, [(12, issue_wo)])
    if npre_b14 == 5: exp_tile(3, [(12, issue_wo)])
    wait_for("v")
    stamp(11)
    barrier()
    stamp(19)
    if zpark:
        zr = [vS+16*7+8, vS+16*7+12, vS+16*6+8, vS+16*6+12]
        a(f"s_cmp_lt_u32 s{WV}, 4\ns_cbranch_scc1 L_nozs")
        a(f"s_lshl_b32 s{T0}, s{LB}, 1\ns_add_u32 s{T0}, s{T0}, {L_AUX}\nv_lshlrev_b32 v13, 4, v1\nv_add_u32 v13, s{T0}, v13")
        for uu in range(4): a(f"ds_read_b128 v[{zr[uu]}:{zr[uu]+3}], v13 offset:{uu*1024}")
        a("v_and_b32 v13, 15, v1\nv_lshlrev_b32 v13, 18, v13\nv_lshrrev_b32 v14, 4, v1\nv_lshl_add_u32 v13, v14, 4, v13")
        for uu in range(4):
            m = ZA if uu == 0 else ZB
            a(f"s_waitcnt lgkmcnt({3-uu})\ns_mov_b32 exec_lo, s{m}\ns_mov_b32 exec_hi, s{m}")
            a(f"buffer_store_dwordx4 v[{zr[uu]}:{zr[uu]+3}], v13, {S4(sWS)}, s{ZS} offen sc1")
            if uu < 3: a(f"s_add_u32 s{ZS}, s{ZS}, 16384")
        a("s_mov_b64 exec, -1")
        a.label("L_nozs")
    vread(7, 0)(); vread(6, 1)()
    OSO, FSO = T1, T5
    a(f"s_lshl_b32 s{OSO}, s{IMIN}, 15\ns_lshl_b32 s{T2}, s{G}, 2\ns_add_u32 s{T2}, s{T2}, s{HH}\ns_lshl_b32 s{T3}, s{T2}, 9")
    a(f"s_add_u32 s{OSO}, s{OSO}, s{T3}\ns_add_u32 s{OSO}, s{OSO}, {WS_OW}")
    a(f"s_lshl_b32 s{T0}, s{IMIN}, 5\ns_add_u32 s{T0}, s{T0}, s{T2}\ns_lshl_b32 s{T0}, s{T0}, 6\ns_add_u32 s{FSO}, s{T0}, {WS_FLAG2}")
    a(f"v_bfe_u32 v{vA}, v1, 4, 1\nv_lshlrev_b32 v{vA}, 14, v{vA}\nv_lshrrev_b32 v{vT}, 5, v1\nv_lshl_add_u32 v{vA}, v{vT}, 8, v{vA}\nv_and_b32 v{vT}, 15, v1\nv_lshl_add_u32 v{vA}, v{vT}, 4, v{vA}")
    if osent:
        for k in range(4): a(f"v_mov_b32 v{vK0+k}, -1")
        a(f"buffer_store_dwordx4 v[{vK0}:{vK0+3}], v{vA}, {S4(sWS)}, s{OSO} offen sc1")
        led("oclr", 1)
    for r in range(16):
        a(f"v_cndmask_b32 v{S8+r}, v{vS+r}, v{S8+r}, s[{MSK+2*r}:{MSK+2*r+1}]")
    def split():
        for k in range(8):
            a(f"v_bfi_b32 v{vS+k}, v{vPM+k}, 0, v{S8+k}\nv_and_b32 v{S8+k}, v{vPM+k}, v{S8+k}")
    order = [7, 6, 5, 4, 3, 8, 0, 2, 1] if npre_b14 == 5 else [7, 6, 5, 4, 8, 0, 3, 2, 1]
    pvq = [0]
    def pv_hooks(positions):
        h = []
        for (p0, p1) in positions:
            n = pvq[0]; pvq[0] += 1
            t = order[n]; buf = n & 1
            ahead = 2 if n + 1 < 9 else 0
            h += [(p0, pv(t, buf, 0, ahead + 1)), (p1, pv(t, buf, 1, ahead))]
            if n + 2 < 9: h.append((p1, vread(order[n+2], buf)))
        return h
    wo2 = [(9, issue_wo), (21, issue_wo)]
    def fa_poll():
        a(f"s_cmp_lt_u32 s{WV}, 4\ns_cbranch_scc1 L_nofp")
        a(f"v_lshrrev_b32 v3, 1, v1\nv_lshlrev_b32 v3, 9, v3\nv_and_b32 v2, 1, v1\nv_lshl_add_u32 v3, v2, 6, v3")
        a(f"s_lshr_b32 s{T2}, s{LB}, 4\ns_add_u32 s{ZT}, s{T2}, {WS_FLAGA}")
        a(f"buffer_load_dword v2, v3, {S4(sWS)}, s{ZT} offen sc1")
        a.label("L_nofp")
        led("fa", 0)
    if npre_b14 == 5:
        three = [(0, 4), (8, 12), (16, 20)]
        exp_tile(8, pv_hooks(three) + wo2); split()
        if fine: stamp(20)
        exp_tile(2, pv_hooks(three) + wo2 + ([] if zpark else [(2, fa_poll)]))
        if fine: stamp(21)
        exp_tile(1, pv_hooks([(0, 6), (12, 18)]) + wo2)
    else:
        two = [(1, 6), (13, 18)]
        exp_tile(8, pv_hooks(two) + wo2); split()
        exp_tile(3, pv_hooks(two) + wo2)
        exp_tile(2, pv_hooks(two) + wo2)
        exp_tile(1, pv_hooks(two) + [(9, issue_wo)])
    assert wo_issued[0] == 8
    a("s_nop 0")
    pv(1, 0, 0, 1)(); pv(1, 0, 1, 0)()
    a("s_nop 7\ns_nop 1")
    a(f"s_mov_b32 s{T2}, {f2u(2.0**-80):#x}\ns_mov_b32 s{T3}, {f2u(2.0**100):#x}\ns_movk_i32 s{T4}, 0x1f8")
    a(f"v_add_f32 v{vT}, v{vO}, v{vO+1}\nv_add_f32 v{vM}, v{vO+2}, v{vO+3}\nv_add_f32 v{vT}, v{vT}, v{vO+4}\nv_add_f32 v{vM}, v{vM}, v{vO+5}")
    a(f"v_add_f32 v{vT}, v{vT}, v{vO+6}\nv_add_f32 v{vM}, v{vM}, v{vO+7}\nv_add_f32 v{vT}, v{vT}, v{vM}")
    a(f"v_cmp_ge_f32 s[8:9], v{vO+8}, s{T2}\nv_cmp_le_f32 vcc, v{vO+8}, s{T3}".replace(f"v_cmp_le_f32 vcc, v{vO+8}, s{T3}", f"v_cmp_ge_f32 vcc, s{T3}, v{vO+8}"))
    a(f"s_and_b64 s[8:9], s[8:9], vcc\nv_cmp_class_f32 vcc, v{vT}, s{T4}".replace(f"v_cmp_class_f32 vcc, v{vT}, s{T4}", f"v_cmp_class_f32_e64 vcc, v{vT}, s{T4}"))
    a(f"v_rcp_f32 v{vT}, v{vO+8}")
    a(f"s_and_b64 vcc, vcc, s[8:9]\ns_cmp_eq_u64 vcc, -1\ns_cbranch_scc0 L_fb")
    a.label("L_norm")
    for k in range(8): a(f"v_mul_f32 v{vO+k}, v{vO+k}, v{vT}")
    for k in range(4): a(f"v_cvt_pk_bf16_f32 v{vO+k}, v{vO+2*k}, v{vO+2*k+1}")
    stamp(12)
    if osent: wait_for("oclr")
    if zpark:
        a(f"s_cmp_lt_u32 s{WV}, 4\ns_cbranch_scc1 L_nocz")
        cnt_add(L_CNTA + 64, rtn=15)
        a.label("L_nocz")
    a(f"buffer_store_dwordx4 v[{vO}:{vO+3}], v{vA}, {S4(sWS)}, s{T1} offen sc1")
    if osent: flag_store(f"s{T5}"); rstamp(32)
    a(f"s_cmp_lt_u32 s{WV}, 4\ns_cbranch_scc1 L_oproj")

    if prio: a("s_setprio 0")
    if zpark: fa_publish()
    vZ = 14
    a(f"v_bfe_u32 v{vZ}, v1, 3, 1\nv_lshlrev_b32 v{vZ}, 9, v{vZ}\nv_lshrrev_b32 v{vA}, 4, v1\nv_lshl_add_u32 v{vZ}, v{vA}, 7, v{vZ}")
    a(f"v_and_b32 v{vA}, 1, v{vA}\nv_xor_b32 v{vA}, v{vA}, v1\nv_and_b32 v{vA}, 7, v{vA}\nv_lshl_add_u32 v{vZ}, v{vA}, 4, v{vZ}")
    a(f"s_lshl_b32 s{T0}, s{SRC}, 14\ns_lshl_b32 s{T1}, s{LB}, 1\ns_add_u32 s{T0}, s{T0}, s{T1}\ns_add_u32 s{T0}, s{T0}, {WS_ZW}")
    a(f"s_add_u32 m0, s{T1}, {L_AUX}")
    led("o", 2 if osent else 1)
    if zpark:
        if osent: a(f"s_add_u32 s{T5}, s{T5}, {WS_FLAG2F-WS_FLAG2}")
        flag_store(f"s{T5}", 0)
        cnt_add(L_CNTW)
        stamp(13)
        fa_poll()
    wait_for("fa")
    a(f"v_cmp_ne_u32 vcc, s{TAG}, v2\ns_mov_b32 s{T4}, 0\ns_cbranch_vccz L_pa_ok")
    a.label("L_pa")
    a(f"s_sleep 8\nbuffer_load_dword v2, v3, {S4(sWS)}, s{ZT} offen sc1\ns_waitcnt vmcnt(0)")
    a(f"v_cmp_ne_u32 vcc, s{TAG}, v2\ns_add_u32 s{T4}, s{T4}, 1\ns_cbranch_vccz L_pa_ok")
    a(f"s_cmp_lt_u32 s{T4}, {POLL_MAX}\ns_cbranch_scc1 L_pa")
    a.label("L_pa_ok")
    for ii in range(4): a(f"buffer_load_dwordx4 v{vZ}, {S4(sWS)}, s{T0} offen offset:{ii*1024} sc1 lds")
    if not zpark:
        if osent: a(f"s_add_u32 s{T5}, s{T5}, {WS_FLAG2F-WS_FLAG2}")
        flag_store(f"s{T5}", 4)
        cnt_add(L_CNTW)
        stamp(13)
    if not osent: rstamp(32)
    stamp(23)
    a("v_bfe_u32 v9, v1, 2, 2\nv_and_b32 v10, 3, v1\nv_and_b32 v12, 15, v1\nv_lshrrev_b32 v13, 4, v1")
    a("v_lshrrev_b32 v4, 1, v9\nv_mul_u32_u24 v5, 17, v4\nv_lshrrev_b32 v6, 1, v13\nv_lshl_add_u32 v5, v6, 6, v5\nv_and_b32 v6, 1, v13\nv_lshl_add_u32 v5, v6, 3, v5\nv_lshl_add_u32 v5, v10, 1, v5")
    a(f"v_and_b32 v7, 1, v9\nv_lshlrev_b32 v5, 4, v5\nv_lshl_add_u32 v5, v7, 3, v5\ns_add_u32 s{T1}, s{T1}, {L_AUX}\nv_add_u32 v60, s{T1}, v5\nv_xor_b32 v61, 16, v60")
    a(f"s_lshr_b32 s{T2}, s{LB}, 11\ns_and_b32 s{T3}, s{T2}, 1")
    a(f"v_and_b32 v8, 2, v13\nv_xor_b32 v8, v8, v12\nv_xor_b32 v11, s{T3}, v13\nv_lshl_or_b32 v8, v11, 4, v8\nv_lshlrev_b32 v8, 3, v8\nv_add_u32 v8, s{T1}, v8")
    a("v_xor_b32 v11, 32, v8\nv_xor_b32 v14, 64, v8\nv_xor_b32 v15, 96, v8")
    a("v_lshrrev_b32 v4, 1, v10\nv_and_b32 v5, 1, v10\nv_mul_u32_u24 v5, 34, v5\nv_or_b32 v4, v4, v5")
    a(f"v_xor_b32 v5, s{T2}, v9\nv_lshl_or_b32 v4, v5, 2, v4\nv_and_b32 v5, 1, v13\nv_lshl_or_b32 v4, v5, 4, v4\nv_lshl_or_b32 v4, v9, 6, v4")
    a(f"v_lshlrev_b32 v4, 3, v4\nv_lshl_add_u32 v4, v13, 12, v4\nv_add_u32 v4, {L_AUX}, v4")
    a("v_xor_b32 v5, 128, v4\nv_xor_b32 v6, 16, v4\nv_xor_b32 v7, 144, v4")
    a(f"v_and_b32 v62, 7, v12\nv_lshlrev_b32 v62, 19, v62\nv_lshrrev_b32 v63, 3, v12\nv_lshl_add_u32 v62, v63, 9, v62\nv_lshl_add_u32 v62, v13, 4, v62")
    a(f"s_lshl_b32 s{T0}, s{K1}, 11\ns_lshr_b32 s{T1}, s{LB}, 4\ns_add_u32 s{T0}, s{T0}, s{T1}")
    D0, C1, Y, C2 = 64, 80, 112, 132
    a(f"s_waitcnt vmcnt({0 if zpark else 1})")
    stamp(24)
    for n2lo in range(2):
        for dB1 in range(2):
            for half in range(2):
                d = D0 + 8*n2lo + 4*dB1 + 2*half
                a(f"ds_read_b64_tr_b16 v[{d}:{d+1}], v{60+dB1} offset:{n2lo*2048+half*512}")
    for n2lo in range(2):
        for dB1 in range(2):
            a(f"s_waitcnt lgkmcnt({6-4*n2lo-2*dB1})")
            for pl in range(2):
                d = C1 + 16*n2lo + 8*dB1 + 4*pl; f = D0 + 8*n2lo + 4*dB1
                a(f"v_mfma_f32_16x16x32_bf16 v[{d}:{d+3}], v[{f}:{f+3}], v[{cF+4*pl}:{cF+4*pl+3}], 0")
    a("s_nop 1")
    wa2 = {(0,0):8, (0,1):11, (1,0):14, (1,1):15}
    for n2lo in range(2):
        for dB1 in range(2):
            for r in range(4):
                zr = C1 + 16*n2lo + 8*dB1 + r; zi = zr + 4
                c = cTW + 4*dB1 + r; s_ = c + 8
                y = Y + 8*n2lo + 4*(r & 1) + 2*dB1 + (r >> 1)
                t = 128 + 2*(r & 1)
                a(f"v_mul_f32 v{t}, v{zr}, v{c}\nv_mul_f32 v{t+1}, v{zi}, v{c}\nv_fmac_f32 v{t}, v{zi}, v{s_}\nv_fma_f32 v{t+1}, -v{zr}, v{s_}, v{t+1}")
                a(f"v_cvt_pk_bf16_f32 v{y}, v{t}, v{t+1}")
        a("s_nop 1")
        for dC in range(2):
            for pl in range(2):
                d = C2 + 16*n2lo + 8*dC + 4*pl; y = Y + 8*n2lo + 4*dC; m = cM2 + 8*dC + 4*pl
                a(f"v_mfma_f32_16x16x32_bf16 v[{d}:{d+3}], v[{y}:{y+3}], v[{m}:{m+3}], 0")
    for n2lo in range(2):
        if n2lo == 1: a("s_nop 1")
        for dC in range(2):
            for pl in range(2):
                d = C2 + 16*n2lo + 8*dC + 4*pl
                a(f"v_cvt_pk_bf16_f32 v{d}, v{d}, v{d+1}\nv_cvt_pk_bf16_f32 v{d+1}, v{d+2}, v{d+3}")
                a(f"ds_write_b64 v{wa2[(dC,pl)]}, v[{d}:{d+1}] offset:{n2lo*2048+dC*1024+pl*512}")
    a("s_waitcnt lgkmcnt(0)")
    cnt_add(L_CNTA)
    stamp(14)
    cnt_wait(L_CNTA, 4, "L_cwa")
    for k in range(4):
        for half in range(2):
            a(f"ds_read_b64_tr_b16 v[{D0+4*k+2*half}:{D0+4*k+2*half+1}], v{4+k} offset:{half*2048}")
    a(f"s_cmp_lg_u32 s2, 0\ns_cbranch_scc1 L_noep\ns_cmp_lg_u32 s{WV}, 4\ns_cbranch_scc1 L_noep")
    assert WS_EPOCH == 0
    flag_store("0")
    a.label("L_noep")
    for k in range(4):
        a(f"s_waitcnt lgkmcnt({6-2*k})")
        a(f"v_mfma_f32_16x16x32_bf16 v[{C1+4*k}:{C1+4*k+3}], v[{D0+4*k}:{D0+4*k+3}], v[{cG3}:{cG3+3}], 0")
    a("s_nop 7")
    for pp in range(2):
        b = C1 + 8*pp
        for k in range(4): a(f"v_cvt_pk_bf16_f32 v{b+k}, v{b+2*k}, v{b+2*k+1}")
        a(f"buffer_store_dwordx4 v[{b}:{b+3}], v62, {S4(sOUT)}, s{T0} offen offset:{pp*64}")
    stamp(15)
    a("s_branch L_fin")

    a.label("L_oproj")
    a(f"s_lshl_b32 s{RP}, s{XCD}, 2\ns_and_b32 s{T0}, s{J}, 3\ns_add_u32 s{RP}, s{RP}, s{T0}")
    a("v_bfe_u32 v9, v1, 2, 2\nv_and_b32 v10, 3, v1\nv_lshrrev_b32 v13, 4, v1")
    a("v_lshrrev_b32 v4, 1, v13\nv_and_b32 v5, 1, v13\nv_lshlrev_b32 v4, 4, v4\nv_lshl_add_u32 v4, v5, 2, v4\nv_add_u32 v4, v4, v9\nv_lshlrev_b32 v4, 7, v4")
    a("v_lshrrev_b32 v6, 1, v9\nv_lshl_add_u32 v6, v5, 1, v6\nv_lshlrev_b32 v6, 1, v6\nv_lshrrev_b32 v7, 1, v10\nv_xor_b32 v6, v6, v7\nv_lshl_add_u32 v4, v6, 4, v4")
    a(f"v_and_b32 v7, 1, v10\nv_lshl_add_u32 v4, v7, 3, v4\nv_add_u32 v4, {L_WO}, v4")
    a("v_xor_b32 v5, 32, v4\nv_xor_b32 v6, 64, v4\nv_xor_b32 v7, 96, v4")
    a(f"s_lshl_b32 s{T0}, s{RP}, 2\ns_add_u32 s{T0}, s{T0}, s{WV}")
    a(f"s_lshl_b32 s{T1}, s{T0}, 14\ns_add_u32 s{T1}, s{T1}, {WS_OW}\nv_lshlrev_b32 v8, 4, v1\nv_add_u32 v8, s{T1}, v8")
    a(f"s_lshr_b32 s{T1}, s{T0}, 1\ns_lshl_b32 s{T1}, s{T1}, 11\ns_add_u32 s{T4}, s{T1}, {WS_FLAG2}\nv_lshlrev_b32 v15, 6, v1")
    a(f"s_lshl_b32 s{T0}, s{T0}, 15\ns_lshr_b32 s{T1}, s{J}, 2\ns_lshl_b32 s{T1}, s{T1}, 7\ns_add_u32 s{T0}, s{T0}, s{T1}\ns_add_u32 s{RP}, s{T0}, 1024")
    a("v_and_b32 v12, 15, v1\nv_lshlrev_b32 v12, 11, v12\nv_and_b32 v14, 1, v13\nv_lshl_add_u32 v12, v14, 5, v12\nv_lshrrev_b32 v14, 1, v13\nv_lshl_add_u32 v12, v14, 4, v12")
    FIN = T5
    if osent: a(f"s_add_u32 s{T5}, s{T5}, {WS_FLAG2F-WS_FLAG2}")
    flag_store(f"s{T5}", 0)
    cnt_add(L_CNTW)
    a(f"s_mov_b32 s{FIN}, 0")
    stamp(13)
    if not osent: rstamp(32)
    OF, ACC = 64, 16
    sets = [128 + 16*k for k in range(7)] + [32, 48]
    sets = sets[:npre]
    def wbase(jj): return sets[jj % len(sets)]
    def wreads(jj):
        b = wbase(jj)
        for nt in range(4):
            for half in range(2):
                a(f"ds_read_b64_tr_b16 v[{b+4*nt+2*half}:{b+4*nt+2*half+1}], v{4+nt} offset:{(32*jj+8*half)*128}")
    cnt_wait(L_CNTW, 8, "L_cww")
    stamp(23)
    a.label("L_oredo")
    def oloads():
        a(f"s_mov_b32 s{T1}, 4096\ns_mov_b32 s{T2}, 8192\ns_mov_b32 s{T3}, 12288")
        for jj in range(16):
            so = ("0", f"s{T1}", f"s{T2}", f"s{T3}")[jj >> 2]
            a(f"buffer_load_dwordx4 v[{OF+4*jj}:{OF+4*jj+3}], v8, {S4(sWS)}, {so} offen offset:{(jj&3)*1024} sc1")
    def pre(lo, hi):
        for jj in range(lo, hi):
            if jj: a("s_waitcnt lgkmcnt(7)")
            wreads(jj)
    H = 4
    a(f"s_mov_b32 exec_hi, 0\ns_waitcnt vmcnt(0)\nbuffer_load_dword v10, v15, {S4(sWS)}, s{T4} offen sc1\ns_mov_b64 exec, -1")
    pre(0, H)
    a(f"s_mov_b32 exec_hi, 0\ns_waitcnt vmcnt(0)\nv_cmp_ne_u32 vcc, s{TAG}, v10\ns_nop 0\ns_cbranch_vccnz L_p2slow\ns_mov_b64 exec, -1")
    stamp(24); rstamp(33)
    oloads()
    pre(H, len(sets))
    a("s_branch L_ogo")
    a.label("L_p2slow")
    a(f"buffer_load_dword v10, v15, {S4(sWS)}, s{T4} offen sc1\ns_mov_b64 exec, -1")
    pre(H, len(sets))
    a("s_mov_b32 exec_hi, 0")
    poll("L_p2", 15, f"s{T4}", [10], T3)
    stamp(24); rstamp(33)
    oloads()
    a.label("L_ogo")
    stamp(14)
    n = len(sets)
    for jj in range(16):
        lg = "lgkmcnt(0)" if jj in (0, n) else ""
        a(f"s_waitcnt vmcnt({15-jj}) {lg}")
        b = wbase(jj)
        for nt in range(4):
            c = "0" if jj == 0 else f"v[{ACC+4*nt}:{ACC+4*nt+3}]"
            a(f"v_mfma_f32_16x16x32_bf16 v[{ACC+4*nt}:{ACC+4*nt+3}], v[{b+4*nt}:{b+4*nt+3}], v[{OF+4*jj}:{OF+4*jj+3}], {c}")
        if jj + n < 16:
            if jj: a("s_waitcnt lgkmcnt(7)")
            wreads(jj + n)
    a("s_nop 4")
    if osent:
        a(f"v_cmp_u_f32 vcc, v{ACC}, v{ACC}\ns_nop 1")
        if force_ofb: a("s_mov_b64 vcc, 1")
        a("s_cbranch_vccnz L_ofb")
        a.label("L_oback")
    else: a("s_nop 2")
    for k in range(8): a(f"v_cvt_pk_bf16_f32 v{ACC+k}, v{ACC+2*k}, v{ACC+2*k+1}")
    a("s_nop 1")
    for p in range(2):
        b = ACC + 4*p
        a(f"v_permlane16_swap_b32 v{b}, v{b+2}\nv_permlane16_swap_b32 v{b+1}, v{b+3}")
    for p in range(2):
        b = ACC + 4*p
        a(f"buffer_store_dwordx4 v[{b}:{b+3}], v12, {S4(sOUT)}, s{RP} offen offset:{p*64}")
    stamp(15)
    a.label("L_fin")
    if stamps:
        a("s_waitcnt vmcnt(0)")
        stamp(16)
        a(f"s_memrealtime s[{T6}:{T7}]\ns_waitcnt lgkmcnt(0)\nv_writelane_b32 v{VST}, s{T6}, 17")
        a(f"s_lshl_b32 s{T0}, s2, 3\ns_add_u32 s{T0}, s{T0}, s{WV}\ns_lshl_b32 s{T0}, s{T0}, 8\ns_add_u32 s{T0}, s{T0}, {WS_STAMP}")
        a(f"v_lshlrev_b32 v4, 2, v1\nbuffer_store_dword v{VST}, v4, {S4(sWS)}, s{T0} offen")
    if dbg:
        a("s_load_dwordx2 s[14:15], s[0:1], 72\ns_waitcnt lgkmcnt(0)")
        a(f"v_not_b32 v5, v{VST}\nv_cmp_eq_u32 vcc, 0, v1\ns_nop 1\nv_cndmask_b32 v5, v{VST}, v5, vcc")
        a("v_subrev_u32 v4, 28, v1\nv_cmp_eq_u32 vcc, 0, v1\ns_nop 1\nv_cndmask_b32 v4, v4, 0, vcc".replace("v_cndmask_b32 v4, v4, 0, vcc", "v_cndmask_b32_e64 v4, v4, 0, vcc"))
        a("v_cmp_eq_u32 vcc, 17, v1\ns_nop 1\nv_cndmask_b32_e64 v4, v4, 1, vcc\nv_lshlrev_b32 v4, 2, v4")
        a("s_mov_b32 exec_lo, 0xc0020001\ns_mov_b32 exec_hi, 0xf")
        a("global_atomic_umax v4, v5, s[14:15]")
    a.label("L_end")
    a("s_endpgm")

    if osent:
        a.label("L_ofb")
        a(f"s_cmp_lg_u32 s{FIN}, 0\ns_cbranch_scc1 L_oback\ns_mov_b32 s{FIN}, 1\ns_add_u32 s{T4}, s{T4}, {WS_FLAG2F-WS_FLAG2}")
        a("s_branch L_oredo")
    for i in outofline:
        a.label(f"L_miss{i}")
        a(f"v_mov_b32 v{vS+16*i}, {NEG:#x}")
        for r in range(1, 16): a(f"v_mov_b32 v{vS+16*i+r}, v{vS+16*i}")
        a(f"s_branch L_back{i}")
    a.label("L_first")
    a(f"v_mov_b32 v13, {NEG:#x}")
    for r in range(16): a(f"v_cndmask_b32 v{S8+r}, v13, v{S8+r}, s[{MSK+2*r}:{MSK+2*r+1}]")
    a("s_branch L_firstback")
    TT, CC, FI = vS + 16, vS + 32, T2
    a.label("L_fb")
    a(f"v_mov_b32 v{vM}, {NEG:#x}\nv_mov_b32 v{vT}, v{vM}\nv_mov_b32 v13, v{vM}")
    def fb_tile(tag, cop):
        a(f"s_add_u32 s{T0}, s{IMIN}, s{FI}\ns_cmp_lt_u32 s{T0}, 8\ns_cbranch_scc1 L_fb{tag}_next")
        a(f"s_lshl_b32 s{T0}, s{FI}, 12\ns_add_u32 s{T0}, s{T0}, s{KOFF}")
        a(f"buffer_load_dwordx4 v[{vK0}:{vK0+3}], v{vKg}, {S4(sKW)}, s{T0} offen sc1\ns_waitcnt vmcnt(0)")
        a(f"v_mfma_f32_32x32x16_bf16 v[{TT}:{TT+15}], v[{vK0}:{vK0+3}], v[{vQ}:{vQ+3}], {cop}\ns_nop 15")
        a(f"s_cmp_lg_u32 s{FI}, 0\ns_cbranch_scc1 L_fb{tag}_n0")
        for r in range(16): a(f"v_cndmask_b32 v{TT+r}, v{TT+r}, v13, s[{MSK+2*r}:{MSK+2*r+1}]")
        a.label(f"L_fb{tag}_n0")
        a(f"s_cmp_lg_u32 s{FI}, 8\ns_cbranch_scc1 L_fb{tag}_n8")
        for r in range(16): a(f"v_cndmask_b32 v{TT+r}, v13, v{TT+r}, s[{MSK+2*r}:{MSK+2*r+1}]")
        a.label(f"L_fb{tag}_n8")
    a(f"s_mov_b32 s{FI}, 0")
    a.label("L_fba")
    fb_tile("a", "0")
    rowmax(range(TT, TT+16), init=True)
    a.label("L_fba_next")
    a(f"s_add_u32 s{FI}, s{FI}, 1\ns_cmp_lt_u32 s{FI}, 9\ns_cbranch_scc1 L_fba")
    halfmax_to_c(CC)
    for k in range(16): a(f"v_mov_b32 v{vO+k}, 0")
    a(f"s_mov_b32 s{FI}, 0")
    a.label("L_fbb")
    fb_tile("b", f"v[{CC}:{CC+15}]")
    for ins in exp_seq(TT): a(ins)
    a(f"s_lshl_b32 s{T0}, s{FI}, 12\nv_add_u32 v14, s{T0}, v{vV}")
    a(f"s_cmp_lg_u32 s{FI}, 7\ns_cbranch_scc1 L_fbb_v7\nv_mov_b32 v14, v{vV7}")
    a.label("L_fbb_v7")
    a(f"s_cmp_lg_u32 s{FI}, 8\ns_cbranch_scc1 L_fbb_v8\nv_mov_b32 v14, v{vV8}")
    a.label("L_fbb_v8")
    a(f"s_mov_b64 exec, s[{VMASK}:{VMASK+1}]\nds_read_b128 v[{vVB}:{vVB+3}], v14\nds_read_b128 v[{vVB+4}:{vVB+7}], v14 offset:512\ns_mov_b64 exec, -1\ns_waitcnt lgkmcnt(0)")
    a(f"v_mfma_f32_32x32x16_bf16 v[{vO}:{vO+15}], v[{vVB}:{vVB+3}], v[{TT}:{TT+3}], v[{vO}:{vO+15}]")
    a(f"v_mfma_f32_32x32x16_bf16 v[{vO}:{vO+15}], v[{vVB+4}:{vVB+7}], v[{TT+4}:{TT+7}], v[{vO}:{vO+15}]\ns_nop 15")
    a.label("L_fbb_next")
    a(f"s_add_u32 s{FI}, s{FI}, 1\ns_cmp_lt_u32 s{FI}, 9\ns_cbranch_scc1 L_fbb")
    a(f"v_rcp_f32 v{vT}, v{vO+8}\ns_nop 0\ns_branch L_norm")
    a.label("L_codeend")
    a(".fill 256, 4, 0xBF800000")
    hdr = open("concat_heads__spectral_fnet__sliding_block__prompt.s.ref").read().split("; Override")[0]
    return kernel_file([dict(name=KN, grid=256, block=512, lds=163840, body=a.text(), vgpr=256, sgpr=102, accum=256)], hdr)

if __name__ == "__main__":
    import json
    open("concat_heads__spectral_fnet__sliding_block__prompt.s", "w").write(gen())
    open("k_st.s", "w").write(gen(stamps=True, fine=True))
    open("k_fb.s", "w").write(gen(force_fb=True))
    open("k_dbg.s", "w").write(gen(stamps=True, dbg=True))
    open("k_ofb.s", "w").write(gen(force_ofb=True))
    variants = eval(sys.argv[1]) if len(sys.argv) > 1 else [{}]
    for i, v in enumerate(variants):
        open(f"ab{i}.s", "w").write(gen(stamps=True, light=True, **v))
    json.dump([repr(v) for v in variants], open("ab.json", "w"))
```
